```python
import torch

def _softmax(x, axis=-1):
    return torch.softmax(x, dim=axis)

def _gelu(x):
    return torch.nn.functional.gelu(x, approximate='tanh')

def _silu(x):
    return torch.nn.functional.silu(x)

def _sigmoid(x):
    return torch.sigmoid(x)

def _layernorm(x, axis=-1, eps=1e-05):
    m = x.mean(dim=axis, keepdim=True)
    v = x.var(dim=axis, keepdim=True, unbiased=False)
    return (x - m) / torch.sqrt(v + eps)

def _scatter_add(tgt, idx, src, axis=0):
    return tgt.clone().index_add_(axis, idx, src)

def _segment_sum(src, seg, n):
    out = torch.zeros((n,) + src.shape[1:], dtype=src.dtype)
    return out.index_add_(0, seg, src)

def _pad(x, pw):
    flat = tuple((v for pair in reversed(pw) for v in pair))
    return torch.nn.functional.pad(x, flat)
kernel_name = 'concat_heads__linear_kernel_hedgehog__memory_aug_recurrent_mem_tr__prompt'

def setup_inputs():

    _w = lambda a: (lambda t: t.to(torch.bfloat16) if t.is_floating_point() else t)(torch.as_tensor(a))

    def _A_setup():
        B, S, D, H = (1, 2048, 448, 16)
        Dh = D // H
        return {'x': _w((lambda *s: torch.randn(*s, dtype=torch.bfloat16) * 0.4)(B, S, D)), 'wqkv': _w((lambda *s: torch.randn(*s, dtype=torch.bfloat16) * 0.4)(D, 3 * D)), 'w_phi': _w((lambda *s: torch.randn(*s, dtype=torch.bfloat16) * 0.4)(H, Dh, Dh) * Dh ** (-0.5)), 'wo': _w((lambda *s: torch.randn(*s, dtype=torch.bfloat16) * 0.05)(D, D))}
    _A_in = _A_setup()

    def _B_setup():
        B, S, Dm = (1, 2048, 448)
        H, Dh = (16, 256)
        M, seg = (8, 32)
        seg = min(seg, S)
        S = S // seg * seg
        return {'x': _w((lambda *s: torch.randn(*s, dtype=torch.bfloat16) * 0.05)(B, S, Dm)), 'mem0': _w((lambda *s: torch.randn(*s, dtype=torch.bfloat16) * 0.8)(B, M, Dm)), 'Wq': _w((lambda *s: torch.randn(*s, dtype=torch.bfloat16) * 1.6)(Dm, H, Dh) * Dm ** (-0.5)), 'Wk': _w((lambda *s: torch.randn(*s, dtype=torch.bfloat16) * 1.6)(Dm, H, Dh) * Dm ** (-0.5)), 'Wv': _w((lambda *s: torch.randn(*s, dtype=torch.bfloat16) * 0.8)(Dm, H, Dh) * Dm ** (-0.5)), 'Wo': _w((lambda *s: torch.randn(*s, dtype=torch.bfloat16) * 0.8)(H, Dh, Dm) * (H * Dh) ** (-0.5)), 'seg_len': seg}
    _B_in = _B_setup()
    return {'A_x': _A_in['x'], 'A_wqkv': _A_in['wqkv'], 'A_w_phi': _A_in['w_phi'], 'A_wo': _A_in['wo'], 'B_x': _B_in['x'], 'B_mem0': _B_in['mem0'], 'B_Wq': _B_in['Wq'], 'B_Wk': _B_in['Wk'], 'B_Wv': _B_in['Wv'], 'B_Wo': _B_in['Wo'], 'B_seg_len': _B_in['seg_len']}

def reference(A_x, A_wqkv, A_w_phi, A_wo, B_x, B_mem0, B_Wq, B_Wk, B_Wv, B_Wo, B_seg_len):

    def _A_ref(x, wqkv, w_phi, wo):
        B, S, D = x.shape
        H = 16
        Dh = D // H
        qkv = (lambda x, *d: x.permute(*d))((x @ wqkv).reshape(B, S, 3, H, Dh), 2, 0, 3, 1, 4)
        q, k, v = (qkv[0], qkv[1], qkv[2])
        pq = torch.einsum('bhsd,hdf->bhsf', q, w_phi)
        pk = torch.einsum('bhsd,hdf->bhsf', k, w_phi)
        phi_q = torch.concatenate([_softmax(pq, axis=-1), _softmax(-pq, axis=-1)], axis=-1)
        phi_k = torch.concatenate([_softmax(pk, axis=-1), _softmax(-pk, axis=-1)], axis=-1)
        kv = torch.einsum('bhsf,bhsd->bhfd', phi_k, v)
        z = torch.einsum('bhsf->bhf', phi_k)
        num = torch.einsum('bhqf,bhfd->bhqd', phi_q, kv)
        den = torch.einsum('bhqf,bhf->bhq', phi_q, z)[..., None] + 1e-06
        o = num / den
        return (lambda x, *d: x.permute(*d))(o, 0, 2, 1, 3).reshape(B, S, D) @ wo

    def _B_ref(x, mem0, Wq, Wk, Wv, Wo, seg_len):
        B, S, Dm = x.shape
        H, Dh = (Wq.shape[1], Wq.shape[2])
        M = mem0.shape[1]
        scale = Dh ** (-0.5)
        n_seg = S // seg_len
        L = M + seg_len
        idx = torch.arange(L)
        mask = (idx[:, None] < M) | (idx[:, None] >= idx[None, :])
        mem = mem0
        outs = []
        for s in range(n_seg):
            xs = x[:, s * seg_len:(s + 1) * seg_len, :].clone()
            h = torch.concatenate([mem, xs], axis=1)
            q = torch.einsum('btd,dhe->bhte', h, Wq)
            k = torch.einsum('btd,dhe->bhte', h, Wk)
            v = torch.einsum('btd,dhe->bhte', h, Wv)
            scores = torch.einsum('bhqe,bhke->bhqk', q, k) * scale
            scores = torch.where(mask[None, None], scores, -1000000000.0)
            p = _softmax(scores, axis=-1)
            o = torch.einsum('bhqk,bhke->bhqe', p, v)
            o = torch.einsum('bhte,hed->btd', o, Wo)
            mem = o[:, :M, :].clone()
            outs.append(o[:, M:, :])
        return torch.concatenate(outs, axis=1)
    a = _A_ref(A_x, A_wqkv, A_w_phi, A_wo)
    b = _B_ref(B_x, B_mem0, B_Wq, B_Wk, B_Wv, B_Wo, B_seg_len)
    return torch.concatenate([a, b], axis=-1)
```

```python
KNAME = "concat_heads__linear_kernel_hedgehog__memory_aug_recurrent_mem_tr__prompt_kernel"
PNAME = "prep_kernel"

GT_OFF  = 0x0000000
GT_SZ   = 16*4*98*1024
UB_OFF  = 0x0640000
UB_SZ   = 28*16*14*1024
WQP_OFF = 0x0C80000
WKP_OFF = 0x0D00000
WVA_OFF = 0x0D80000
WOT_OFF = 0x0E00000
XB_OFF  = 0x0E80000
XB_STEP = 32768
XB_SZ   = 65*XB_STEP
ZR_OFF  = 0x1100000
YXF_OFF = ZR_OFF
PXF_OFF = ZR_OFF + 8192
KV_OFF  = ZR_OFF + 16384
ZR_SZ   = 16384 + 131072
PXX_OFF = 0x1200000
PXX_STR = 2560
PXX_SZ  = 64*16*PXX_STR
YX_OFF  = 0x1800000
assert GT_OFF+GT_SZ <= UB_OFF and UB_OFF+UB_SZ <= WQP_OFF and XB_OFF+XB_SZ <= ZR_OFF and ZR_OFF+ZR_SZ <= PXX_OFF
assert PXX_OFF + PXX_SZ <= YX_OFF

LOG2E = 1.4426950408889634
import struct
def f2u(x): return struct.unpack('<I', struct.pack('<f', x))[0]

class Asm:
    def __init__(self): self.L=[]; self.n=0
    def __call__(self, s, *a):
        for line in (s % a if a else s).split('\n'):
            self.L.append('    '+line.strip() if line.strip() and not line.strip().endswith(':') else line.strip())
    def lab(self, name): self.L.append(name+':')
    def newlab(self, p='L'):
        self.n+=1; return '%s_%d'%(p,self.n)
    def c(self, s): self.L.append('    ; '+s)
    def text(self): return '\n'.join(self.L)+'\n'

def vr(b,n=4): return 'v[%d:%d]'%(b,b+n-1) if n>1 else 'v%d'%b
def ar(b,n=4): return 'a[%d:%d]'%(b,b+n-1) if n>1 else 'a%d'%b
def sr(b,n=2): return 's[%d:%d]'%(b,b+n-1) if n>1 else 's%d'%b
```

```python
from common import *
GRID=256; LDS=122880
NCH=63
MF='v_mfma_f32_16x16x32_bf16'
ENABLE=dict(G=1,U=1,UX=1,GX=1,A=1)

def opreg(q):
    return ar(4*q) if q<64 else vr(176+4*(q-64))

class K:
    def __init__(s,A): s.A=A; s.ool=Asm(); s.ool.n=5000
    def budget(s,O):
        O('s_sub_u32 s15, s15, 1\ns_cbranch_scc1 M_end')
    def check(s,O,regs):
        r=list(regs)
        assert len(r)==4
        O('v_max3_u32 v15, v%d, v%d, v%d'%tuple(r[:3]))
        O('v_max_u32 v15, v15, v%d'%r[3])
        O('v_cmp_eq_u32 vcc, -1, v15')
    def staged(s,name,stages,mid=3):
        A=s.A; O=s.ool
        n=len(stages); cnt=[len(st['loads']) for st in stages]
        after=lambda k: sum(cnt[k+1:])
        def issue(X,k):
            for j in range(k,n):
                for l in stages[j]['loads']: X(l)
        issue(A,0)
        A.lab(name+'_C0')
        A('s_waitcnt vmcnt(%d)'%after(0)); s.check(A,stages[0]['regs']); A('s_cbranch_vccnz %s_R0'%name)
        O.lab(name+'_R0'); s.budget(O); issue(O,0); O('s_branch %s_C0'%name)
        for k in range(n):
            A.lab('%s_S%d'%(name,k))
            body=stages[k]['body']
            m=min(mid,len(body))
            for b in body[:m]: A(b)
            if k+1<n:
                A('s_waitcnt vmcnt(%d)'%after(k+1)); s.check(A,stages[k+1]['regs'])
            for b in body[m:]: A(b)
            if k+1<n:
                A('s_cbranch_vccnz %s_R%d'%(name,k+1))
                O.lab('%s_R%d'%(name,k+1)); s.budget(O); issue(O,k+1)
                O('s_waitcnt vmcnt(%d)'%after(k+1)); s.check(O,stages[k+1]['regs'])
                O('s_cbranch_vccnz %s_R%d\ns_branch %s_S%d'%(name,k+1,name,k+1))

def ld_resident(A, nres, vaddr='v2', base='s[30:31]', start=0):
    for q in range(nres):
        A('global_load_dwordx4 %s, %s, %s offset:%d'%(opreg(q),vaddr,base,(q%4)*1024))
        if q%4==3: A('v_add_u32 %s, 4096, %s'%(vaddr,vaddr))

def memload(kk, base='s[16:17]'):
    return 'global_load_dwordx4 %s, %s, %s offset:%d sc1'%(vr(16+4*kk),'v3' if kk<8 else 'v4',base,(kk%8)*512)

def dpp_red(A, op, regs, steps):
    for st in steps:
        if len(regs)<3: A('s_nop %d'%(2-len(regs)))
        for r in regs: A('%s_dpp v%d, v%d, v%d %s row_mask:0xf bank_mask:0xf'%(op,r,r,r,st))
D16=['quad_perm:[1,0,3,2]','quad_perm:[2,3,0,1]','row_half_mirror','row_mirror']
D8=D16[:3]

def load_G_weights(A):
    A('''
    s_lshl_b32 s28, s26, 2
    s_add_u32 s28, s28, s3
    s_mul_i32 s28, s28, %d
    s_add_u32 s30, s4, s28
    s_addc_u32 s31, s5, 0
    v_lshlrev_b32 v2, 4, v1
    v_add_u32 v5, %d, v2
    '''%(98*1024, 84*1024))
    for kk in range(14):
        A('global_load_dwordx4 %s, v5, s[30:31] offset:%d'%(vr(16+4*kk),(kk%4)*1024))
        if kk%4==3: A('v_add_u32 v5, 4096, v5')
    ld_resident(A,84)
    A('''
    s_mul_i32 s28, s3, 14336
    v_lshl_add_u32 v8, v1, 4, s28
    s_waitcnt vmcnt(63)
    ''')
    for kk in range(14): A('ds_write_b128 v8, %s offset:%d'%(vr(16+4*kk),kk*1024))

def G_consts(A):
    A('''
    v_and_b32 v10, 7, v1
    v_lshrrev_b32 v11, 4, v1               ; g
    v_lshlrev_b32 v3, 6, v10
    v_lshl_add_u32 v3, v11, 4, v3
    v_add_u32 v4, 4096, v3
    ; n' = 7w (+1): addr=(n'>>1)*512+(n'&1)*32+(l&7)*64+g*8
    s_mul_i32 s28, s3, 7
    s_lshr_b32 s29, s28, 1
    s_lshl_b32 s29, s29, 9
    s_and_b32 s32, s28, 1
    s_lshl_b32 s32, s32, 5
    s_add_u32 s29, s29, s32
    v_lshlrev_b32 v5, 6, v10
    v_lshl_add_u32 v5, v11, 3, v5
    v_add_u32 v6, 0, v5
    v_add_u32 v5, s29, v5
    s_add_u32 s28, s28, 1
    s_lshr_b32 s29, s28, 1
    s_lshl_b32 s29, s29, 9
    s_and_b32 s32, s28, 1
    s_lshl_b32 s32, s32, 5
    s_add_u32 s29, s29, s32
    v_add_u32 v6, s29, v6
    ; xA: (l&15)*896 + 224w + 8g
    v_and_b32 v12, 15, v1
    v_mul_u32_u24 v7, 896, v12
    v_lshl_add_u32 v7, v11, 3, v7
    s_mul_i32 s28, s3, 224
    v_add_u32 v7, s28, v7
    v_add_u32 v9, 14336, v7
    ''')

def xA_loads(A, base='s[24:25]'):
    for jt in range(2):
        for idx in range(7):
            A('global_load_dwordx2 %s, %s, %s offset:%d'%(vr(128+16*jt+2*idx,2),'v7' if jt==0 else 'v9',base,idx*32))

def T_body(kk, last_extra=None):
    b=[]
    if last_extra and kk==13: b+=last_extra
    for t in range(6):
        b.append('%s %s, %s, %s, %s'%(MF,vr(72+4*t),opreg(t*14+kk),vr(16+4*kk),'0' if kk==0 else vr(72+4*t)))
    if kk==0: b.append('s_waitcnt lgkmcnt(0)')
    elif kk>=7: b.append('s_waitcnt lgkmcnt(%d)'%(13-kk))
    b.append('%s %s, %s, %s, %s'%(MF,vr(96),vr(100+4*(kk%7)),vr(16+4*kk),'0' if kk==0 else vr(96)))
    if kk<7: b.append('ds_read_b128 %s, v8 offset:%d'%(vr(100+4*kk),(kk+7)*1024))
    return b
def T_cvt(A, dst):
    A('s_nop 0')
    for t in range(7):
        A('v_cvt_pk_bf16_f32 v%d, v%d, v%d'%(dst+2*t,72+4*t,73+4*t))
        A('v_cvt_pk_bf16_f32 v%d, v%d, v%d'%(dst+2*t+1,74+4*t,75+4*t))
    A('v_mov_b32 v%d, 0\nv_mov_b32 v%d, 0'%(dst+14,dst+15))
def t6_first(A):
    for kk in range(7): A('ds_read_b128 %s, v8 offset:%d'%(vr(100+4*kk),kk*1024))

def xcc_mode(A,k):
    A('''
    s_getreg_b32 s21, hwreg(HW_REG_XCC_ID)
    s_and_b32 s21, s21, 15
    s_add_u32 s21, s21, 1
    s_cmp_lg_u32 s3, 0
    s_cbranch_scc1 %s_nopub
    s_lshl_b32 s28, s27, 2
    s_add_u32 s28, s28, 64
    v_mov_b32 v10, s28
    v_mov_b32 v11, s21
    s_mov_b64 exec, 1
    global_store_dword v10, v11, s[6:7] sc1
    s_mov_b64 exec, -1
    %s_nopub:
    '''%(k,k))
def xcc_wait(A,k):
    A('''
    v_min_u32 v10, 29, v1
    v_lshlrev_b32 v10, 2, v10
    %s_xp:
    global_load_dword v11, v10, s[6:7] offset:64 sc1
    s_waitcnt vmcnt(0)
    v_cmp_eq_u32 vcc, 0, v11
    s_cbranch_vccz %s_xok
    s_sub_u32 s15, s15, 1
    s_cbranch_scc1 M_end
    s_branch %s_xp
    %s_xok:
    v_cmp_ne_u32 vcc, s21, v11
    s_cmp_eq_u64 vcc, 0
    s_cselect_b32 s20, 1, 0
    '''%(k,k,k,k))

LDS_GP=57344
def role_G(Kx):
    A=Kx.A
    A.lab('R_G')
    A('s_mov_b32 s26, s27')
    xcc_mode(A,'G')
    load_G_weights(A)
    G_consts(A)
    A('''
    ; partial write addr v10 ; softmax read addrs v11 (x) v12 (mem) ; PM store offs v13 v14
    v_and_b32 v12, 15, v1
    v_lshrrev_b32 v11, 4, v1
    v_mul_u32_u24 v10, 208, v12
    v_lshl_add_u32 v10, v11, 4, v10
    s_mul_i32 s28, s3, 1664
    s_add_u32 s28, s28, %d
    v_add_u32 v10, s28, v10
    v_mov_b32 v174, 0
    v_mov_b32 v175, 0
    v_mov_b32 v142, 0
    v_mov_b32 v143, 0
    v_mov_b32 v158, 0
    v_mov_b32 v159, 0
    '''%LDS_GP)
    A('v_mov_b32 v44, v10')
    xcc_wait(A,'G')
    A('''
    v_mov_b32 v10, v44
    v_and_b32 v12, 15, v1                  ; e
    v_bfe_u32 v11, v1, 4, 1                ; row sel
    s_lshl_b32 s28, s3, 1
    v_add_u32 v11, s28, v11                ; m
    v_mul_u32_u24 v45, 208, v11
    v_add_u32 v45, %d, v45
    v_and_b32 v46, 3, v12
    v_lshl_add_u32 v47, v46, 3, v45
    v_add_u32 v47, 128, v47                ; mem read addr
    v_lshl_add_u32 v45, v12, 3, v45        ; x read addr
    ; PM x off = m*64 + ((e>>1)&3)*16 + (e>>3)*8 + (e&1)*4
    v_lshlrev_b32 v13, 6, v11
    v_bfe_u32 v46, v12, 1, 2
    v_lshl_add_u32 v13, v46, 4, v13
    v_lshrrev_b32 v46, 3, v12
    v_lshl_add_u32 v13, v46, 3, v13
    v_and_b32 v46, 1, v12
    v_lshl_add_u32 v13, v46, 2, v13
    ; PM mem off = 512 + m*16 + e*4
    v_lshlrev_b32 v14, 4, v11
    v_lshl_add_u32 v14, v12, 2, v14
    v_add_u32 v14, 512, v14
    v_mov_b32 v11, v45
    v_mov_b32 v12, v47
    s_mov_b32 s34, 0x000f000f              ; lanes e<4 (of 64)
    s_mov_b32 s35, 0x000f000f
    s_mov_b32 s36, 0x00ff00ff
    s_mov_b32 s37, 0x00ff00ff
    ; bases
    s_mov_b32 s14, 0
    s_cmp_eq_u32 s20, 1
    s_cselect_b32 s28, 0, 8192
    s_add_u32 s28, s28, 0x%x
    s_add_u32 s16, s4, s28
    s_addc_u32 s17, s5, 0
    s_lshl_b32 s28, s26, 10
    s_add_u32 s28, s28, 0x%x
    s_add_u32 s18, s4, s28
    s_addc_u32 s19, s5, 0
    s_mov_b32 s24, s8
    s_mov_b32 s25, s9
    '''%(LDS_GP,XB_OFF,XB_OFF+16384))
    xA_loads(A)
    A('s_waitcnt lgkmcnt(0)')
    A.lab('G_loop')
    t6_first(A)
    memA=['global_load_dwordx2 %s, %s, s[16:17] offset:%d sc1'%(vr(160+2*idx,2),'v5' if idx%2==0 else 'v6',(idx>>1)*512) for idx in range(7)]
    st=[dict(loads=[memload(kk)],regs=range(16+4*kk,20+4*kk),body=T_body(kk,memA)) for kk in range(14)]
    Kx.staged('Gp',st)
    T_cvt(A,16)
    for p in range(4):
        for jt in range(2):
            A('%s %s, %s, %s, %s'%(MF,vr(32+4*jt),vr(128+16*jt+4*p),vr(16+4*p),'0' if p==0 else vr(32+4*jt)))
    A('s_waitcnt vmcnt(0)')
    for p in range(4):
        A('%s %s, %s, %s, %s'%(MF,vr(40),vr(160+4*p),vr(16+4*p),'0' if p==0 else vr(40)))
    A('''
    s_mov_b64 exec, s[36:37]
    s_nop 0
    ds_write_b128 v10, v[32:35]
    ds_write_b128 v10, v[36:39] offset:64
    s_nop 3
    ds_write_b128 v10, v[40:43] offset:128
    s_mov_b64 exec, -1
    s_waitcnt lgkmcnt(0)
    s_barrier
    ''')
    for ww in range(4): A('ds_read_b64 %s, v11 offset:%d'%(vr(44+2*ww,2),ww*1664))
    for ww in range(4): A('ds_read_b64 %s, v12 offset:%d'%(vr(52+2*ww,2),ww*1664))
    A('''
    s_waitcnt lgkmcnt(4)
    v_add_f32 v44, v44, v46
    v_add_f32 v45, v45, v47
    v_add_f32 v48, v48, v50
    v_add_f32 v49, v49, v51
    v_add_f32 v44, v44, v48
    v_add_f32 v45, v45, v49
    s_waitcnt lgkmcnt(0)
    v_add_f32 v52, v52, v54
    v_add_f32 v53, v53, v55
    v_add_f32 v56, v56, v58
    v_add_f32 v57, v57, v59
    v_add_f32 v52, v52, v56
    v_add_f32 v53, v53, v57
    v_max_f32 v60, v44, v45
    v_max3_f32 v60, v60, v52, v53
    ''')
    dpp_red(A,'v_max_f32',[60],D16)
    A('''
    v_sub_f32 v44, v44, v60
    v_sub_f32 v45, v45, v60
    v_sub_f32 v52, v52, v60
    v_sub_f32 v53, v53, v60
    v_exp_f32 v52, v52
    v_exp_f32 v53, v53
    v_exp_f32 v44, v44
    v_exp_f32 v45, v45
    v_add_f32 v61, v52, v53
    v_cndmask_b32 v61, 0, v61, s[34:35]
    v_add_f32 v62, v44, v45
    v_add_f32 v61, v61, v62
    ''')
    dpp_red(A,'v_add_f32',[61],D16)
    A('''
    v_rcp_f32 v61, v61
    s_mov_b32 exec_hi, 0
    v_mul_f32 v44, v44, v61
    v_mul_f32 v45, v45, v61
    v_mul_f32 v52, v52, v61
    v_mul_f32 v53, v53, v61
    v_cvt_pk_bf16_f32 v44, v44, v45
    v_cvt_pk_bf16_f32 v52, v52, v53
    s_cmp_eq_u32 s20, 1
    s_cbranch_scc0 G_slowst
    global_store_dword v13, v44, s[18:19]
    s_mov_b64 exec, 0x000f000f
    global_store_dword v14, v52, s[18:19]
    G_stdone:
    s_mov_b64 exec, -1
    s_add_u32 s14, s14, 1
    s_cmp_ge_u32 s14, %d
    s_cbranch_scc1 M_end
    s_add_u32 s16, s16, 32768
    s_addc_u32 s17, s17, 0
    s_add_u32 s18, s18, 32768
    s_addc_u32 s19, s19, 0
    s_add_u32 s24, s24, 28672
    s_addc_u32 s25, s25, 0
    '''%NCH)
    xA_loads(A)
    A('s_branch G_loop')
    Kx.ool('''
    G_slowst:
    global_store_dword v13, v44, s[18:19] sc1
    s_mov_b64 exec, 0x000f000f
    global_store_dword v14, v52, s[18:19] sc1
    s_branch G_stdone
    ''')

LDS_UR=114688
def role_U(Kx):
    A=Kx.A
    A.lab('R_U')
    A('s_sub_u32 s26, s27, 16                 ; u')
    xcc_mode(A,'U')
    A('''
    s_lshl_b32 s28, s26, 5
    s_lshl_b32 s29, s3, 2
    s_add_u32 s28, s28, s29
    s_mul_i32 s28, s28, 14336
    s_add_u32 s28, s28, 0x%x
    s_add_u32 s30, s4, s28
    s_addc_u32 s31, s5, 0
    v_lshlrev_b32 v2, 4, v1
    '''%UB_OFF)
    for c in range(2):
        A('v_add_u32 v5, %d, v2'%((16*c+3)*14336))
        for kk in range(14):
            A('global_load_dwordx4 %s, v5, s[30:31] offset:%d'%(vr(16+4*(kk*2+c)),(kk%4)*1024))
            if kk%4==3: A('v_add_u32 v5, 4096, v5')
    for hh in range(3):
        for c in range(2):
            A('v_add_u32 v5, %d, v2'%((16*c+hh)*14336))
            for kk in range(14):
                A('global_load_dwordx4 %s, v5, s[30:31] offset:%d'%(opreg((hh*2+c)*14+kk),(kk%4)*1024))
                if kk%4==3: A('v_add_u32 v5, 4096, v5')
    A('''
    s_mul_i32 s28, s3, 28672
    v_lshl_add_u32 v8, v1, 4, s28
    s_waitcnt vmcnt(63)
    ''')
    for q in range(28): A('ds_write_b128 v8, %s offset:%d'%(vr(16+4*q),q*1024))
    xcc_wait(A,'U')
    A('''
    v_and_b32 v10, 7, v1
    v_lshrrev_b32 v11, 4, v1               ; g
    v_and_b32 v12, 15, v1
    v_lshlrev_b32 v3, 6, v10
    v_lshl_add_u32 v3, v11, 4, v3
    v_add_u32 v4, 4096, v3
    v_lshlrev_b32 v5, 4, v1
    v_add_u32 v6, 16384, v5
    v_add_u32 v7, 0, v3                    ; P x off
    ; P mem off = (g>>1)*2048 + 512 + m*16 + (g&1)*8
    v_lshrrev_b32 v13, 1, v11
    v_lshlrev_b32 v9, 11, v13
    v_lshl_add_u32 v9, v10, 4, v9
    v_and_b32 v13, 1, v11
    v_lshl_add_u32 v9, v13, 3, v9
    v_add_u32 v9, 512, v9
    ; reduce write addr
    v_mul_u32_u24 v10, 144, v12
    v_lshl_add_u32 v10, v11, 4, v10
    s_lshl_b32 s28, s3, 5
    s_add_u32 s28, s28, %d
    v_add_u32 v10, s28, v10
    ; reduce read addr: 2cp*144 + m*4 ; m = 2w + ((l>>4)&1)
    v_bfe_u32 v13, v1, 4, 1
    s_lshl_b32 s28, s3, 1
    v_add_u32 v13, s28, v13                ; m
    v_mul_u32_u24 v11, 288, v12
    v_lshl_add_u32 v11, v13, 2, v11
    v_add_u32 v11, %d, v11
    ; store off = u*512 + m*64 + cp*4
    v_lshlrev_b32 v13, 6, v13
    v_lshl_add_u32 v12, v12, 2, v13
    s_lshl_b32 s28, s26, 9
    v_add_u32 v12, s28, v12
    v_add_u32 v13, 8192, v12
    ; flag addr
    v_and_b32 v14, 1, v1
    s_lshl_b32 s28, s26, 1
    v_add_u32 v14, s28, v14
    v_lshlrev_b32 v14, 4, v14
    s_lshl_b32 s28, s3, 2
    s_add_u32 s28, s28, 0x%x
    v_add_u32 v14, s28, v14
    s_mov_b32 s34, 0
    s_mov_b32 s35, -1
    s_mov_b32 s14, 0
    s_mov_b32 s22, 0                       ; seen
    s_cmp_eq_u32 s20, 1
    s_cselect_b32 s28, 0, 8192
    s_add_u32 s28, s28, 0x%x
    s_add_u32 s16, s4, s28
    s_addc_u32 s17, s5, 0
    s_lshl_b32 s28, s3, 12
    s_add_u32 s28, s28, 0x%x
    s_add_u32 s18, s4, s28
    s_addc_u32 s19, s5, 0
    s_add_u32 s38, s4, 0x%x                ; mem out base (s+1)
    s_addc_u32 s39, s5, 0
    s_lshl_b32 s28, s26, 15
    s_lshl_b32 s29, s3, 12
    s_add_u32 s28, s28, s29
    s_add_u32 s28, s28, 0x%x
    s_add_u32 s24, s4, s28                 ; YX base
    s_addc_u32 s25, s5, 0
    s_waitcnt lgkmcnt(0)
    '''%(LDS_UR,LDS_UR,YXF_OFF,XB_OFF,XB_OFF+16384,XB_OFF+32768,YX_OFF))
    A.lab('U_loop')
    A('''
    s_cmp_gt_u32 s22, s14
    s_cbranch_scc0 U_fl
    U_flok:
    ''')
    Kx.ool('''
    U_fl:
    global_load_dword v15, v14, s[4:5] sc1
    s_waitcnt vmcnt(0)
    v_readlane_b32 s28, v15, 0
    v_readlane_b32 s29, v15, 1
    s_min_u32 s22, s28, s29
    s_cmp_gt_u32 s22, s14
    s_cbranch_scc1 U_flok
    s_sub_u32 s15, s15, 1
    s_cbranch_scc1 M_end
    s_branch U_fl
    ''')
    for kk in range(3):
        for c in range(2): A('ds_read_b128 %s, v8 offset:%d'%(vr(104+4*(kk*2+c)),(kk*2+c)*1024))
    yx=['global_load_dwordx4 %s, %s, s[24:25] offset:%d sc1'%(vr(128+4*(hh*2+c)),'v5' if c==0 else 'v6',hh*1024) for hh in range(4) for c in range(2)]
    st=[]
    for kk in range(14):
        b=[]
        if kk==13: b+=yx
        for hh in range(3):
            for c in range(2):
                d=vr(72+4*(hh*2+c))
                b.append('%s %s, %s, %s, %s'%(MF,d,vr(16+4*kk),opreg((hh*2+c)*14+kk),'0' if kk==0 else d))
        b.append('s_waitcnt lgkmcnt(%d)'%(4 if kk<=11 else 2*(13-kk)))
        for c in range(2):
            d=vr(72+4*(6+c))
            b.append('%s %s, %s, %s, %s'%(MF,d,vr(16+4*kk),vr(104+4*((kk%3)*2+c)),'0' if kk==0 else d))
        if kk+3<=13:
            for c in range(2): b.append('ds_read_b128 %s, v8 offset:%d'%(vr(104+4*((kk%3)*2+c)),((kk+3)*2+c)*1024))
        st.append(dict(loads=[memload(kk)],regs=range(16+4*kk,20+4*kk),body=b))
    Kx.staged('Um',st)
    for q in range(8):
        A('v_cvt_pk_bf16_f32 v%d, v%d, v%d'%(40+2*q,72+4*q,73+4*q))
        A('v_cvt_pk_bf16_f32 v%d, v%d, v%d'%(41+2*q,74+4*q,75+4*q))
    T=lambda hh,c,i: 40+2*(hh*2+c)+i
    for c in range(2):
        for a in range(2):
            for i in range(2):
                A('v_cndmask_b32 v%d, v%d, v%d, s[34:35]'%(168+4*c+2*a+i,T(a,c,i),T(a+2,c,i)))
    st=[]
    for hh in range(4):
        st.append(dict(loads=['global_load_dwordx4 %s, v7, s[18:19] offset:%d sc1'%(vr(16+4*hh),hh*1024)],regs=range(16+4*hh,20+4*hh),
            body=['%s %s, %s, %s, %s'%(MF,vr(160+4*c),vr(16+4*hh),vr(128+4*(hh*2+c)),'0' if hh==0 else vr(160+4*c)) for c in range(2)]))
    st.append(dict(loads=['global_load_dwordx2 v[32:33], v9, s[18:19] sc1','global_load_dwordx2 v[34:35], v9, s[18:19] offset:1024 sc1'],regs=range(32,36),
            body=['%s %s, %s, %s, %s'%(MF,vr(160+4*c),vr(32),vr(168+4*c),vr(160+4*c)) for c in range(2)]))
    Kx.staged('Up',st,mid=1)
    A('''
    s_mov_b32 exec_hi, 0
    s_nop 5
    ds_write_b128 v10, v[160:163]
    s_nop 0
    ds_write_b128 v10, v[164:167] offset:2304
    s_waitcnt lgkmcnt(0)
    s_barrier
    ''')
    for ww in range(4): A('ds_read2_b32 %s, v11 offset0:%d offset1:%d'%(vr(40+2*ww,2),ww*8,ww*8+36))
    A('''
    s_waitcnt lgkmcnt(2)
    v_add_f32 v40, v40, v42
    v_add_f32 v41, v41, v43
    s_waitcnt lgkmcnt(0)
    v_add_f32 v44, v44, v46
    v_add_f32 v45, v45, v47
    v_add_f32 v40, v40, v44
    v_add_f32 v41, v41, v45
    v_cvt_pk_bf16_f32 v40, v40, v41
    v_min_u32 v40, -2, v40
    global_store_dword v12, v40, s[38:39]
    global_store_dword v13, v40, s[38:39] sc1
    s_mov_b64 exec, -1
    s_add_u32 s14, s14, 1
    s_cmp_ge_u32 s14, %d
    s_cbranch_scc1 M_end
    s_add_u32 s16, s16, 32768
    s_addc_u32 s17, s17, 0
    s_add_u32 s18, s18, 32768
    s_addc_u32 s19, s19, 0
    s_add_u32 s38, s38, 32768
    s_addc_u32 s39, s39, 0
    s_add_u32 s24, s24, %d
    s_addc_u32 s25, s25, 0
    s_branch U_loop
    '''%(NCH,28*16384))

def role_UX(Kx):
    A=Kx.A
    A.lab('R_UX')
    A('''
    s_lshl_b32 s28, s26, 4
    s_lshl_b32 s29, s3, 2
    s_add_u32 s28, s28, s29
    s_mul_i32 s28, s28, 14336
    s_add_u32 s28, s28, 0x%x
    s_add_u32 s30, s4, s28
    s_addc_u32 s31, s5, 0
    v_lshlrev_b32 v2, 4, v1
    v_and_b32 v12, 15, v1
    v_lshrrev_b32 v11, 4, v1
    v_mul_u32_u24 v3, 896, v12
    v_lshl_add_u32 v3, v11, 4, v3
    v_add_u32 v4, 14336, v3
    s_mov_b32 s24, s8
    s_mov_b32 s25, s9
    '''%UB_OFF)
    xl=lambda kk,jt: 'global_load_dwordx4 %s, %s, s[24:25] offset:%d'%(vr(16+4*(kk*2+jt)),'v3' if jt==0 else 'v4',kk*64)
    ld_resident(A,56)
    for kk in range(14):
        for jt in range(2): A(xl(kk,jt))
    A('''
    v_lshlrev_b32 v5, 4, v1                ; YX lane off
    s_lshl_b32 s28, s26, 14
    s_lshl_b32 s29, s3, 12
    s_add_u32 s28, s28, s29
    s_add_u32 s28, s28, 0x%x
    s_add_u32 s18, s4, s28                 ; YX base (s=0)
    s_addc_u32 s19, s5, 0
    s_mov_b32 s40, s18
    s_mov_b32 s41, s19
    s_lshl_b32 s28, s26, 4
    s_lshl_b32 s29, s3, 2
    s_add_u32 s28, s28, s29
    s_add_u32 s28, s28, 0x%x
    v_mov_b32 v6, s28                      ; flag off
    s_mov_b32 s14, 0
    s_add_u32 s24, s24, 28672
    s_addc_u32 s25, s25, 0
    s_waitcnt vmcnt(0)
    '''%(YX_OFF,YXF_OFF))
    A.lab('X1_loop')
    for kk in range(14):
        A('s_waitcnt vmcnt(31)')
        for jt in range(2):
            for hh in range(4):
                d=vr(128+4*(hh*2+jt))
                A('%s %s, %s, %s, %s'%(MF,d,vr(16+4*(kk*2+jt)),ar(4*(hh*14+kk)),'0' if kk==0 else d))
        for jt in range(2): A(xl(kk,jt))
    A('s_nop 4')
    for hh in range(4):
        for jt in range(2):
            q=hh*2+jt
            A('v_cvt_pk_bf16_f32 v%d, v%d, v%d'%(160+2*q,128+4*q,129+4*q))
            A('v_cvt_pk_bf16_f32 v%d, v%d, v%d'%(161+2*q,130+4*q,131+4*q))
    for hh in range(4):
        A('global_store_dwordx4 v5, %s, s[18:19] offset:%d sc1'%(vr(160+4*hh),hh*1024))
    A('''
    v_mov_b32 v7, s14
    s_waitcnt vmcnt(33)
    s_mov_b64 exec, 1
    global_store_dword v6, v7, s[4:5] sc1
    s_mov_b64 exec, -1
    s_add_u32 s14, s14, 1
    s_add_u32 s18, s18, %d
    s_addc_u32 s19, s19, 0
    s_cmp_ge_u32 s14, 63
    s_cbranch_scc1 X1_noinc
    s_add_u32 s24, s24, 28672
    s_addc_u32 s25, s25, 0
    X1_noinc:
    s_cmp_lt_u32 s14, 64
    s_cbranch_scc1 X1_loop
    v_mov_b32 v7, 64
    s_waitcnt vmcnt(0)
    s_mov_b64 exec, 1
    global_store_dword v6, v7, s[4:5] sc1
    s_mov_b64 exec, -1
    '''%(28*16384))
    A('''
    v_and_b32 v10, 7, v1
    v_lshrrev_b32 v11, 4, v1               ; g
    v_and_b32 v12, 15, v1
    v_lshlrev_b32 v3, 6, v10
    v_lshl_add_u32 v3, v11, 4, v3
    v_add_u32 v4, 4096, v3
    ; P x offs v6..v9 : (l&15)*64 + g*16 + hh*2560
    v_lshlrev_b32 v6, 6, v12
    v_lshl_add_u32 v6, v11, 4, v6
    v_add_u32 v7, 2560, v6
    v_add_u32 v8, 5120, v6
    v_add_u32 v9, 7680, v6
    ; P mem off v10 = (g>>1)*5120 + 2048 + (l&15)*16 + (g&1)*8
    v_lshrrev_b32 v13, 1, v11
    v_mul_u32_u24 v10, 5120, v13
    v_lshl_add_u32 v10, v12, 4, v10
    v_and_b32 v13, 1, v11
    v_lshl_add_u32 v10, v13, 3, v10
    v_add_u32 v10, 2048, v10
    ; reduce write addr v11' = c*528 + w*128 + g*16
    v_mul_u32_u24 v13, 528, v12
    v_lshl_add_u32 v11, v11, 4, v13
    s_lshl_b32 s28, s3, 7
    v_add_u32 v11, s28, v11
    ; reduce read addr v12 = 2cp*528 + q*4 ; q = tid>>3, cp = tid&7
    v_lshrrev_b32 v13, 3, v0
    v_and_b32 v14, 7, v0
    v_mul_u32_u24 v12, 1056, v14
    v_lshl_add_u32 v12, v13, 2, v12
    ; out off v13 = q*1792 + 896 + ct*32 + cp*4
    v_mul_u32_u24 v13, 1792, v13
    v_lshl_add_u32 v13, v14, 2, v13
    s_lshl_b32 s28, s26, 5
    s_add_u32 s28, s28, 896
    v_add_u32 v13, s28, v13
    s_mov_b32 s34, 0
    s_mov_b32 s35, -1
    s_mov_b32 s14, 0
    s_add_u32 s16, s4, 0x%x
    s_addc_u32 s17, s5, 0
    s_mul_i32 s28, s3, %d
    s_add_u32 s28, s28, 0x%x
    s_add_u32 s18, s4, s28
    s_addc_u32 s19, s5, 0
    s_mov_b32 s38, s10
    s_mov_b32 s39, s11
    '''%(XB_OFF+8192,4*PXX_STR,PXX_OFF))
    A.lab('X2_loop')
    for hh in range(4): A('global_load_dwordx4 %s, v5, s[40:41] offset:%d sc1'%(vr(72+4*hh),hh*1024))
    st=[]
    for kk in range(14):
        b=['%s %s, %s, %s, %s'%(MF,vr(128+4*hh),vr(16+4*kk),ar(4*(hh*14+kk)),'0' if kk==0 else vr(128+4*hh)) for hh in range(4)]
        st.append(dict(loads=[memload(kk)],regs=range(16+4*kk,20+4*kk),body=b))
    Kx.staged('Xm',st,mid=1)
    A('s_nop 4')
    for hh in range(4):
        A('v_cvt_pk_bf16_f32 v%d, v%d, v%d'%(92+2*hh,128+4*hh,129+4*hh))
        A('v_cvt_pk_bf16_f32 v%d, v%d, v%d'%(93+2*hh,130+4*hh,131+4*hh))
    for a in range(2):
        for i in range(2):
            A('v_cndmask_b32 v%d, v%d, v%d, s[34:35]'%(88+2*a+i,92+2*a+i,92+2*(a+2)+i))
    st=[]
    for qt in range(2):
        for hh in range(4):
            r=16+20*qt+4*hh
            st.append(dict(loads=['global_load_dwordx4 %s, v%d, s[18:19] offset:%d sc1'%(vr(r),6+hh,qt*1024)],regs=range(r,r+4),
                body=['%s %s, %s, %s, %s'%(MF,vr(144+4*qt),vr(r),vr(72+4*hh),'0' if hh==0 else vr(144+4*qt))]))
        r=32+20*qt
        st.append(dict(loads=['global_load_dwordx2 %s, v10, s[18:19] offset:%d sc1'%(vr(r+2*a,2),a*2560+qt*256) for a in range(2)],regs=range(r,r+4),
                body=['%s %s, %s, %s, %s'%(MF,vr(144+4*qt),vr(r),vr(88),vr(144+4*qt))]))
    Kx.staged('Xp',st,mid=1)
    A('''
    s_and_b32 s28, s14, 1
    s_mul_i32 s28, s28, 8448
    v_add_u32 v60, s28, v11
    v_add_u32 v61, s28, v12
    s_nop 4
    ds_write_b128 v60, v[144:147]
    ds_write_b128 v60, v[148:151] offset:64
    s_waitcnt lgkmcnt(0)
    s_barrier
    ''')
    for ww in range(4): A('ds_read2_b32 %s, v61 offset0:%d offset1:%d'%(vr(62+2*ww,2),ww*32,ww*32+132))
    A('''
    s_waitcnt lgkmcnt(0)
    v_add_f32 v62, v62, v64
    v_add_f32 v63, v63, v65
    v_add_f32 v66, v66, v68
    v_add_f32 v67, v67, v69
    v_add_f32 v62, v62, v66
    v_add_f32 v63, v63, v67
    v_cvt_pk_bf16_f32 v62, v62, v63
    global_store_dword v13, v62, s[38:39]
    s_add_u32 s14, s14, 1
    s_cmp_ge_u32 s14, 64
    s_cbranch_scc1 M_end
    s_add_u32 s16, s16, 32768
    s_addc_u32 s17, s17, 0
    s_add_u32 s18, s18, %d
    s_addc_u32 s19, s19, 0
    s_add_u32 s38, s38, %d
    s_addc_u32 s39, s39, 0
    s_add_u32 s40, s40, %d
    s_addc_u32 s41, s41, 0
    s_branch X2_loop
    '''%(16*PXX_STR,32*1792,28*16384))

def role_GX(Kx):
    A=Kx.A
    A.lab('R_GX')
    A('s_and_b32 s14, s26, 1\ns_lshr_b32 s26, s26, 1')
    load_G_weights(A)
    G_consts(A)
    A('''
    ; xB offsets v3/v4 (qt0/qt1): (l&15)*896 + g*16
    v_and_b32 v12, 15, v1
    v_lshrrev_b32 v11, 4, v1
    v_mul_u32_u24 v3, 896, v12
    v_lshl_add_u32 v3, v11, 4, v3
    v_add_u32 v4, 14336, v3
    ; partial write addr v10 = LDS_GP + w*6656 + (l&15)*208 + g*16
    v_mul_u32_u24 v10, 208, v12
    v_lshl_add_u32 v10, v11, 4, v10
    s_mul_i32 s28, s3, 6656
    s_add_u32 s28, s28, %d
    v_add_u32 v10, s28, v10
    ; softmax: q = tid>>3, e = tid&7 ; v11 = LDS_GP + q*208 + e*16 ; v2 = mem addr
    v_lshrrev_b32 v12, 3, v0
    v_and_b32 v13, 7, v0
    v_mul_u32_u24 v11, 208, v12
    v_add_u32 v11, %d, v11
    v_lshl_add_u32 v2, v13, 2, v11
    v_add_u32 v2, 128, v2
    v_lshl_add_u32 v11, v13, 4, v11
    v_lshlrev_b32 v14, 2, v13
    v_cmp_le_u32 s[44:45], v14, v12
    v_add_u32 v14, 1, v14
    v_cmp_le_u32 s[46:47], v14, v12
    v_add_u32 v14, 1, v14
    v_cmp_le_u32 s[48:49], v14, v12
    v_add_u32 v14, 1, v14
    v_cmp_le_u32 s[50:51], v14, v12
    ; store offs: x: q*64 + (e&3)*16 + (e>>2)*8 -> v0' ; mem: 2048 + q*16 + e*2
    v_lshlrev_b32 v14, 6, v12
    v_and_b32 v15, 3, v13
    v_lshl_add_u32 v14, v15, 4, v14
    v_lshrrev_b32 v15, 2, v13
    v_lshl_add_u32 v14, v15, 3, v14
    v_lshlrev_b32 v12, 4, v12
    v_lshl_add_u32 v12, v13, 1, v12
    v_add_u32 v0, 2048, v12
    v_mov_b32 v1, v14
    v_mov_b32 v142, 0
    v_mov_b32 v143, 0
    v_mov_b32 v158, 0
    v_mov_b32 v159, 0
    ; bases
    s_lshl_b32 s28, s14, 15
    s_add_u32 s28, s28, 0x%x
    s_add_u32 s16, s4, s28
    s_addc_u32 s17, s5, 0
    s_lshl_b32 s28, s14, 4
    s_add_u32 s28, s28, s26
    s_mul_i32 s28, s28, %d
    s_add_u32 s28, s28, 0x%x
    s_add_u32 s18, s4, s28
    s_addc_u32 s19, s5, 0
    s_mul_i32 s28, s14, 28672
    s_add_u32 s24, s8, s28
    s_addc_u32 s25, s9, 0
    s_mov_b32 s42, 0                       ; lds buffer toggle
    s_mov_b32 s43, 0xf149f2ca              ; -1e30
    s_waitcnt lgkmcnt(0)
    '''%(LDS_GP,LDS_GP,XB_OFF+8192,PXX_STR,PXX_OFF))
    xb=lambda kk,qt: 'global_load_dwordx4 %s, %s, s[24:25] offset:%d'%(vr(16+4*kk),'v3' if qt==0 else 'v4',kk*64)
    A.lab('GX_loop')
    xA_loads(A)
    for kk in range(14): A(xb(kk,0))
    A('v_add_u32 v12, s42, v10')
    for qt in range(2):
        t6_first(A)
        for kk in range(14):
            A('s_waitcnt vmcnt(%d)'%(13 if qt==0 else 13-kk))
            for b in T_body(kk): A(b)
            if qt==0: A(xb(kk,1))
        tb=160 if qt==0 else 16
        T_cvt(A,tb)
        if qt==0:
            for p in range(4):
                A('%s %s, %s, %s, %s'%(MF,vr(72),vr(128+4*p),vr(tb+4*p),'0' if p==0 else vr(72)))
            A('s_nop 7\nds_write_b128 v12, v[72:75]\ns_nop 1')
        else:
            for p in range(4):
                for jt in range(2):
                    A('%s %s, %s, %s, %s'%(MF,vr(48+4*jt),vr(128+16*jt+4*p),vr(tb+4*p),'0' if p==0 else vr(48+4*jt)))
    A('v_mov_b32 v46, 0\nv_mov_b32 v47, 0')
    memA=['global_load_dwordx2 %s, %s, s[16:17] offset:%d sc1'%(vr(32+2*idx,2),'v5' if idx%2==0 else 'v6',(idx>>1)*512) for idx in range(7)]
    st=[]
    for p in range(4):
        b=['%s %s, %s, %s, %s'%(MF,vr(56+4*qt),vr(32+4*p),vr((160 if qt==0 else 16)+4*p),'0' if p==0 else vr(56+4*qt)) for qt in range(2)]
        st.append(dict(loads=memA[2*p:2*p+2],regs=range(32+4*p,36+4*p),body=b))
    Kx.staged('Gxm',st,mid=1)
    A('''
    ds_write_b128 v12, v[48:51] offset:%d
    ds_write_b128 v12, v[52:55] offset:%d
    v_add_u32 v13, s42, v11
    v_add_u32 v14, s42, v2
    s_nop 3
    ds_write_b128 v12, v[56:59] offset:128
    ds_write_b128 v12, v[60:63] offset:%d
    s_waitcnt lgkmcnt(0)
    s_barrier
    '''%(16*208,16*208+64,16*208+128))
    for ww in range(4): A('ds_read_b128 %s, v13 offset:%d'%(vr(32+4*ww),ww*6656))
    for ww in range(4): A('ds_read_b32 v%d, v14 offset:%d'%(48+ww,ww*6656))
    A('s_waitcnt lgkmcnt(0)')
    for i in range(4):
        A('v_add_f32 v%d, v%d, v%d'%(32+i,32+i,36+i))
        A('v_add_f32 v%d, v%d, v%d'%(40+i,40+i,44+i))
        A('v_add_f32 v%d, v%d, v%d'%(32+i,32+i,40+i))
        A('v_mov_b32 v52, s43')
        A('v_cndmask_b32 v%d, v52, v%d, s[%d:%d]'%(32+i,32+i,44+2*i,45+2*i))
    A('''
    v_add_f32 v48, v48, v49
    v_add_f32 v50, v50, v51
    v_add_f32 v48, v48, v50
    v_max3_f32 v52, v32, v33, v34
    v_max3_f32 v52, v52, v35, v48
    ''')
    dpp_red(A,'v_max_f32',[52],D8)
    for r in (32,33,34,35,48): A('v_sub_f32 v%d, v%d, v52'%(r,r))
    for r in (32,33,34,35,48): A('v_exp_f32 v%d, v%d'%(r,r))
    A('''
    s_nop 0
    v_add_f32 v53, v32, v33
    v_add_f32 v54, v34, v35
    v_add_f32 v53, v53, v48
    v_add_f32 v53, v53, v54
    ''')
    dpp_red(A,'v_add_f32',[53],D8)
    A('v_rcp_f32 v53, v53\ns_nop 0')
    for r in (32,33,34,35,48): A('v_mul_f32 v%d, v%d, v53'%(r,r))
    A('''
    v_cvt_pk_bf16_f32 v32, v32, v33
    v_cvt_pk_bf16_f32 v33, v34, v35
    v_mov_b32_dpp v49, v48 quad_perm:[1,0,3,2] row_mask:0xf bank_mask:0xf
    global_store_dwordx2 v1, v[32:33], s[18:19] sc1
    v_cvt_pk_bf16_f32 v48, v48, v49
    s_mov_b32 exec_lo, 0x55555555
    s_mov_b32 exec_hi, 0x55555555
    global_store_dword v0, v48, s[18:19] sc1
    s_mov_b64 exec, -1
    s_add_u32 s14, s14, 2
    s_cmp_ge_u32 s14, 64
    s_cbranch_scc1 M_end
    s_add_u32 s16, s16, 65536
    s_addc_u32 s17, s17, 0
    s_add_u32 s18, s18, %d
    s_addc_u32 s19, s19, 0
    s_add_u32 s24, s24, 57344
    s_addc_u32 s25, s25, 0
    s_xor_b32 s42, s42, 26624
    s_branch GX_loop
    '''%(32*PXX_STR))

def gen_main(A):
    A.L.append('.globl %s\n.p2align 8\n.type %s,@function'%(KNAME,KNAME)); A.lab(KNAME)
    Kx=K(A)
    A('''
    s_cmp_ge_u32 s2, 256
    s_cbranch_scc1 M_end
    s_load_dwordx2 s[4:5], s[0:1], 104
    s_load_dwordx2 s[6:7], s[0:1], 96
    s_load_dwordx2 s[8:9], s[0:1], 32
    s_load_dwordx2 s[10:11], s[0:1], 88
    s_load_dwordx2 s[12:13], s[0:1], 0
    v_and_b32 v1, 63, v0
    v_lshrrev_b32 v2, 6, v0
    s_mov_b32 s15, 0x400000
    v_readfirstlane_b32 s3, v2
    s_and_b32 s26, s2, 7
    s_lshr_b32 s27, s2, 3
    s_waitcnt lgkmcnt(0)
    s_cmp_lg_u32 s26, 0
    s_cbranch_scc1 M_other
    s_cmp_lt_u32 s27, 16
    s_cbranch_scc1 %s
    s_cmp_lt_u32 s27, 30
    s_cbranch_scc1 %s
    s_branch M_end
    M_other:
    s_mul_i32 s27, s27, 7
    s_add_u32 s26, s26, s27
    s_sub_u32 s26, s26, 1                  ; idx
    s_cmp_lt_u32 s26, 28
    s_cbranch_scc1 %s
    s_sub_u32 s26, s26, 28
    s_cmp_lt_u32 s26, 32
    s_cbranch_scc1 %s
    s_sub_u32 s26, s26, 32
    s_cmp_lt_u32 s26, 64
    s_cbranch_scc1 %s
    M_end:
    s_endpgm
    '''%tuple(('R_'+r if ENABLE[r] else 'M_end') for r in ('G','U','UX','GX','A')))
    role_G(Kx); role_U(Kx); role_UX(Kx); role_GX(Kx)
    import roleA; roleA.role_A(Kx)
    A.L+=Kx.ool.L
def main_desc():
    return '''.amdhsa_kernel %s
  .amdhsa_next_free_vgpr 512
  .amdhsa_next_free_sgpr 102
  .amdhsa_accum_offset 256
  .amdhsa_group_segment_fixed_size 0
  .amdhsa_kernarg_size 112
  .amdhsa_user_sgpr_count 2
  .amdhsa_user_sgpr_kernarg_segment_ptr 1
  .amdhsa_system_sgpr_workgroup_id_x 1
.end_amdhsa_kernel
''' % KNAME
```

```python
from common import *
NB_GEMM=256; NB_QK=128; NB_V=64; NB_O=64; NB_INIT=64
PREP_GRID = NB_GEMM+NB_QK+NB_V+NB_O+NB_INIT
PREP_LDS = 256*240
def gen_prep(A):
    A.L.append('.globl %s\n.p2align 8\n.type %s,@function'%(PNAME,PNAME)); A.lab(PNAME)
    A('''
    s_cmp_ge_u32 s2, %d
    s_cbranch_scc1 P_end
    s_load_dwordx4 s[8:11], s[0:1], 8      ; wqkv, w_phi
    s_load_dwordx2 s[12:13], s[0:1], 24    ; wo
    s_load_dwordx2 s[14:15], s[0:1], 40    ; mem0
    s_load_dwordx8 s[16:23], s[0:1], 48    ; Wq Wk Wv Wo
    s_load_dwordx2 s[24:25], s[0:1], 104   ; ws
    v_and_b32 v1, 63, v0                   ; lane
    v_lshrrev_b32 v2, 6, v0                ; wave
    v_and_b32 v3, 15, v1                   ; l&15
    v_lshrrev_b32 v4, 4, v1                ; g
    s_nop 0
    v_readfirstlane_b32 s3, v2             ; wave id
    s_waitcnt lgkmcnt(0)
    s_cmp_ge_u32 s2, %d
    s_cbranch_scc1 P_notgemm
    ''' % (PREP_GRID, NB_GEMM))
    A('''
    s_lshr_b32 s26, s2, 7                  ; mat
    s_lshr_b32 s27, s2, 3
    s_and_b32 s27, s27, 15                 ; h
    s_lshr_b32 s28, s2, 1
    s_and_b32 s28, s28, 3                  ; wq
    s_and_b32 s29, s2, 1                   ; half
    s_mul_i32 s30, s29, 7
    s_add_u32 s30, s30, s3                 ; kk
    s_cmp_eq_u32 s26, 0
    s_cselect_b32 s32, s16, s20
    s_cselect_b32 s33, s17, s21
    s_lshl_b32 s34, s27, 9                 ; h*512
    v_lshrrev_b32 v5, 2, v3
    v_lshlrev_b32 v5, 3, v5
    v_and_b32 v6, 3, v3
    v_add_u32 v5, v5, v6
    s_lshl_b32 s35, s30, 5
    v_add_u32 v5, s35, v5                  ; k (a=0)
    v_lshlrev_b32 v5, 13, v5               ; *8192
    v_lshl_add_u32 v5, v4, 4, v5           ; + g*16
    v_add_u32 v5, s34, v5                  ; + h*512
    v_add_u32 v6, 0x8000, v5               ; a=1: +4 rows
    ''')
    for ee in range(8):
        A('global_load_dwordx4 %s, v5, s[32:33] offset:%d' % (vr(16+4*ee), ee*64))
        A('global_load_dwordx4 %s, v6, s[32:33] offset:%d' % (vr(48+4*ee), ee*64))
    A('''
    s_cmp_eq_u32 s26, 0
    s_cbranch_scc0 P_ustage
    ; ---- G: B' from Wk rows n = 112wq + 16t + nl
    s_mul_i32 s36, s28, 112
    v_add_u32 v7, s36, v3
    v_lshlrev_b32 v7, 13, v7
    v_lshl_add_u32 v7, v4, 4, v7
    v_add_u32 v7, s34, v7
    ; out base = GT + ((h*4+wq)*98 + kk)*1024 + lane*16
    s_lshl_b32 s37, s27, 2
    s_add_u32 s37, s37, s28
    s_mul_i32 s37, s37, 98
    s_add_u32 s37, s37, s30
    s_lshl_b32 s37, s37, 10
    v_lshl_add_u32 v8, v1, 4, s37
    s_mov_b32 s38, 0x%08x                  ; scale = log2e/16
    ''' % f2u(LOG2E/16))
    for t in range(7):
        for ee in range(8):
            A('global_load_dwordx4 %s, v7, s[18:19] offset:%d' % (vr(80+4*ee), ee*64))
        A('v_add_u32 v7, 0x20000, v7')
        A('s_waitcnt vmcnt(0)')
        for ee in range(8):
            A('v_mfma_f32_16x16x32_bf16 v[112:115], %s, %s, %s' % (vr(16+4*ee), vr(80+4*ee), '0' if ee==0 else 'v[112:115]'))
            A('v_mfma_f32_16x16x32_bf16 v[116:119], %s, %s, %s' % (vr(48+4*ee), vr(80+4*ee), '0' if ee==0 else 'v[116:119]'))
        A('s_nop 7\ns_nop 1')
        for r in range(8): A('v_mul_f32 v%d, s38, v%d' % (112+r,112+r))
        for r in range(4): A('v_cvt_pk_bf16_f32 v%d, v%d, v%d' % (120+r,112+2*r,113+2*r))
        A('global_store_dwordx4 v8, v[120:123], s[24:25]')
        A('v_add_u32 v8, %d, v8' % (14*1024))
        A('s_nop 1')
    A('s_branch P_end')
    A.lab('P_ustage')
    A('''
    ; thread tid copies pieces p = tid + 448*i (i<8): row e = p/14, piece = p%%14
    s_mul_i32 s36, s27, 229376             ; h*256*896
    s_mul_i32 s39, s28, 224
    s_add_u32 s36, s36, s39                ; + c0*2
    s_mov_b32 s40, 0x12492493              ; ceil(2^32/14)
    ''')
    for i in range(8):
        A('''
        v_add_u32 v9, %d, v0
        v_mul_hi_u32 v10, v9, s40
        v_mul_u32_u24 v11, 14, v10
        v_sub_u32 v11, v9, v11
        v_mul_u32_u24 v12, 896, v10
        v_lshl_add_u32 v12, v11, 4, v12
        v_add_u32 v12, s36, v12
        global_load_dwordx4 %s, v12, s[22:23]
        v_mul_u32_u24 v%d, 240, v10
        v_lshl_add_u32 v%d, v11, 4, v%d
        ''' % (448*i, vr(80+4*i), 124+i, 124+i, 124+i))
    A('s_waitcnt vmcnt(0)')
    for i in range(8):
        A('ds_write_b128 v%d, %s' % (124+i, vr(80+4*i)))
    A('''
    s_waitcnt lgkmcnt(0)
    s_barrier
    ; tr read address: row = 8g' + (lam>>2) (+32ee +4), col byte = (16t + 4*(lam&3))*2
    v_lshrrev_b32 v7, 2, v3
    v_lshl_add_u32 v7, v4, 3, v7
    v_mul_u32_u24 v7, 240, v7
    v_and_b32 v9, 3, v3
    v_lshl_add_u32 v7, v9, 3, v7
    ; out base = UB + (((7wq+t)*16+h)*14+kk)*1024 + lane*16
    s_mul_i32 s37, s28, 7*16
    s_add_u32 s37, s37, s27
    s_mul_i32 s37, s37, 14
    s_add_u32 s37, s37, s30
    s_lshl_b32 s37, s37, 10
    s_add_u32 s37, s37, 0x%x
    v_lshl_add_u32 v8, v1, 4, s37
    ''' % UB_OFF)
    for t in range(7):
        for ee in range(8):
            A('ds_read_b64_tr_b16 %s, v7 offset:%d' % (vr(80+4*ee,2), ee*32*240 + t*32))
            A('ds_read_b64_tr_b16 %s, v7 offset:%d' % (vr(82+4*ee,2), (ee*32+4)*240 + t*32))
        A('s_waitcnt lgkmcnt(0)')
        for ee in range(8):
            A('v_mfma_f32_16x16x32_bf16 v[112:115], %s, %s, %s' % (vr(16+4*ee), vr(80+4*ee), '0' if ee==0 else 'v[112:115]'))
            A('v_mfma_f32_16x16x32_bf16 v[116:119], %s, %s, %s' % (vr(48+4*ee), vr(80+4*ee), '0' if ee==0 else 'v[116:119]'))
        A('s_nop 7\ns_nop 1')
        for r in range(4): A('v_cvt_pk_bf16_f32 v%d, v%d, v%d' % (120+r,112+2*r,113+2*r))
        A('global_store_dwordx4 v8, v[120:123], s[24:25]')
        A('v_add_u32 v8, %d, v8' % (16*14*1024))
        A('s_nop 1')
    A('s_branch P_end')
    A.lab('P_notgemm')
    A('''
    s_sub_u32 s26, s2, %d
    s_cmp_ge_u32 s26, %d
    s_cbranch_scc1 P_notqk
    ; global wave index gw = (s26*7 + wave) in [0,896): mat = gw/448, rem = gw%%448 : nt = rem/14, kk = rem%%14
    s_mul_i32 s27, s26, 7
    s_add_u32 s27, s27, s3
    s_cmp_ge_u32 s27, 448
    s_cselect_b32 s28, 1, 0                ; mat
    s_mul_i32 s29, s28, 448
    s_sub_u32 s29, s27, s29                ; rem
    s_mov_b32 s40, 0x12492493
    s_mul_hi_u32 s30, s29, s40             ; nt
    s_mul_i32 s31, s30, 14
    s_sub_u32 s31, s29, s31                ; kk
    s_lshr_b32 s32, s30, 1                 ; h
    s_and_b32 s33, s30, 1                  ; a
    ; f = 16a + nl ; valid f<28
    s_lshl_b32 s34, s33, 4
    v_add_u32 v5, s34, v3                  ; f
    v_min_u32 v6, 27, v5                   ; clamp for address
    s_mul_i32 s35, s32, 1568
    v_lshl_add_u32 v6, v6, 1, s35          ; w_phi byte off = h*1568 + f*2 (+ d*56)
    ''' % (NB_GEMM, NB_QK))
    for d in range(28):
        A('global_load_ushort v%d, v6, s[10:11] offset:%d' % (16+d, d*56))
    A('''
    s_lshl_b32 s36, s31, 5
    v_lshl_add_u32 v7, v4, 3, s36
    v_mul_u32_u24 v7, 2688, v7
    s_mul_i32 s37, s28, 896
    s_mul_i32 s38, s32, 56
    s_add_u32 s37, s37, s38
    v_add_u32 v7, s37, v7
    s_waitcnt vmcnt(0)
    ''')
    for d in range(28): A('v_lshlrev_b32 v%d, 16, v%d' % (16+d,16+d))
    for i in range(8):
        for q in range(7):
            A('global_load_dwordx2 %s, v7, s[8:9] offset:%d' % (vr(48+2*q,2), q*8))
        A('v_add_u32 v7, 2688, v7')
        A('v_mov_b32 v%d, 0' % (64+i))
        A('s_waitcnt vmcnt(0)')
        for dd in range(14):
            A('v_lshlrev_b32 v72, 16, v%d' % (48+dd))
            A('v_and_b32 v73, 0xffff0000, v%d' % (48+dd))
            A('v_fmac_f32 v%d, v72, v%d' % (64+i, 16+2*dd))
            A('v_fmac_f32 v%d, v73, v%d' % (64+i, 17+2*dd))
    A('s_mov_b32 s38, 0x%08x' % f2u(LOG2E))
    A('v_cmp_gt_u32 vcc, 28, v5')
    for i in range(8):
        A('v_mul_f32 v%d, s38, v%d' % (64+i,64+i))
        A('v_cndmask_b32 v%d, 0, v%d, vcc' % (64+i,64+i))
    for r in range(4): A('v_cvt_pk_bf16_f32 v%d, v%d, v%d' % (76+r,64+2*r,65+2*r))
    A('''
    s_lshl_b32 s37, s29, 10                ; rem*1024
    s_mul_i32 s38, s28, %d
    s_add_u32 s37, s37, s38
    s_add_u32 s37, s37, 0x%x
    v_lshl_add_u32 v8, v1, 4, s37
    global_store_dwordx4 v8, v[76:79], s[24:25]
    s_branch P_end
    ''' % (WKP_OFF-WQP_OFF, WQP_OFF))
    A.lab('P_notqk')
    A('''
    s_sub_u32 s26, s26, %d
    s_cmp_ge_u32 s26, %d
    s_cbranch_scc1 P_notv
    s_mul_i32 s29, s26, 7
    s_add_u32 s29, s29, s3                 ; rem in [0,448)
    s_mov_b32 s40, 0x12492493
    s_mul_hi_u32 s30, s29, s40             ; nt
    s_mul_i32 s31, s30, 14
    s_sub_u32 s31, s29, s31                ; kk
    s_lshr_b32 s32, s30, 1                 ; h
    s_and_b32 s33, s30, 1
    s_lshl_b32 s34, s33, 4
    v_add_u32 v5, s34, v3                  ; f
    v_min_u32 v6, 27, v5
    s_lshl_b32 s36, s31, 5
    v_lshl_add_u32 v7, v4, 3, s36          ; k0
    v_mul_u32_u24 v7, 2688, v7
    s_mul_i32 s38, s32, 56
    s_add_u32 s37, s38, 1792
    v_add_u32 v7, s37, v7
    v_lshl_add_u32 v7, v6, 1, v7
    ''' % (NB_QK, NB_V))
    for i in range(8):
        A('global_load_ushort v%d, v7, s[8:9]' % (16+i))
        A('v_add_u32 v7, 2688, v7')
    A('s_waitcnt vmcnt(0)\nv_cmp_gt_u32 vcc, 28, v5')
    for r in range(4):
        A('v_lshl_or_b32 v%d, v%d, 16, v%d' % (76+r, 17+2*r, 16+2*r))
        A('v_cndmask_b32 v%d, 0, v%d, vcc' % (76+r,76+r))
    A('''
    s_lshl_b32 s37, s29, 10
    s_add_u32 s37, s37, 0x%x
    v_lshl_add_u32 v8, v1, 4, s37
    global_store_dwordx4 v8, v[76:79], s[24:25]
    s_branch P_end
    ''' % WVA_OFF)
    A.lab('P_notv')
    A('''
    s_sub_u32 s26, s26, %d
    s_cmp_ge_u32 s26, %d
    s_cbranch_scc1 P_init
    s_mul_i32 s29, s26, 7
    s_add_u32 s29, s29, s3                 ; idx in [0,448): ct = idx>>4, h = idx&15
    s_lshr_b32 s30, s29, 4
    s_and_b32 s32, s29, 15
    ; elem i: d = i<4 ? 4g+i : 16+4g+i-4 ; wo[(h*28+d)][16ct+cl]
    s_mul_i32 s36, s32, 28*896
    s_lshl_b32 s37, s30, 5
    s_add_u32 s36, s36, s37
    v_lshl_add_u32 v7, v3, 1, s36
    v_mul_u32_u24 v9, 4*896, v4
    v_add_u32 v7, v7, v9                   ; d=4g
    v_min_u32 v10, 2, v4                   ; clamp g for upper half (g=3 invalid)
    v_mul_u32_u24 v9, 4*896, v10
    v_lshl_add_u32 v11, v3, 1, s36
    v_add_u32 v11, v11, v9
    v_add_u32 v11, 16*896, v11             ; d=16+4g
    ''' % (NB_V, NB_O))
    for i in range(4):
        A('global_load_ushort v%d, v7, s[12:13] offset:%d' % (16+i, i*896))
        A('global_load_ushort v%d, v11, s[12:13] offset:%d' % (20+i, i*896))
    A('s_waitcnt vmcnt(0)\nv_cmp_gt_u32 vcc, 3, v4')
    for r in range(4):
        A('v_lshl_or_b32 v%d, v%d, 16, v%d' % (76+r, 17+2*r, 16+2*r))
    A('v_cndmask_b32 v78, 0, v78, vcc\nv_cndmask_b32 v79, 0, v79, vcc')
    A('''
    s_lshl_b32 s37, s29, 10
    s_add_u32 s37, s37, 0x%x
    v_lshl_add_u32 v8, v1, 4, s37
    global_store_dwordx4 v8, v[76:79], s[24:25]
    s_branch P_end
    ''' % WOT_OFF)
    A.lab('P_init')
    nthr = NB_INIT*448
    fill_n = (XB_SZ-16384)//16
    zero_n = ZR_SZ//16
    A('''
    s_sub_u32 s26, s26, %d
    s_mul_i32 s27, s26, 448
    v_add_u32 v5, s27, v0                  ; global thread idx
    v_mov_b32 v16, -1
    v_mov_b32 v17, -1
    v_mov_b32 v18, -1
    v_mov_b32 v19, -1
    v_mov_b32 v20, 0
    v_mov_b32 v21, 0
    v_mov_b32 v22, 0
    v_mov_b32 v23, 0
    ; SRD for fill region
    s_add_u32 s44, s24, 0x%x
    s_addc_u32 s45, s25, 0
    s_and_b32 s45, s45, 0xffff
    s_mov_b32 s46, %d
    s_mov_b32 s47, 0x00020000
    s_add_u32 s48, s24, 0x%x
    s_addc_u32 s49, s25, 0
    s_and_b32 s49, s49, 0xffff
    s_mov_b32 s50, %d
    s_mov_b32 s51, 0x00020000
    v_lshlrev_b32 v6, 4, v5
    buffer_store_dwordx4 v[20:23], v6, s[48:51], 0 offen
    ''' % (NB_O, XB_OFF+16384, XB_SZ-16384, ZR_OFF, ZR_SZ))
    assert zero_n <= nthr
    for i in range((fill_n + nthr-1)//nthr):
        A('buffer_store_dwordx4 v[16:19], v6, s[44:47], 0 offen')
        A('v_add_u32 v6, %d, v6' % (nthr*16))
    A('''
    s_add_u32 s44, s24, 0x%x
    s_addc_u32 s45, s25, 0
    s_and_b32 s45, s45, 0xffff
    s_mov_b32 s46, %d
    v_lshlrev_b32 v6, 4, v5
    ''' % (PXX_OFF, PXX_SZ))
    for i in range((PXX_SZ//16 + nthr-1)//nthr):
        A('buffer_store_dwordx4 v[16:19], v6, s[44:47], 0 offen')
        A('v_add_u32 v6, %d, v6' % (nthr*16))
    A('''
    s_cmp_lg_u32 s26, 0
    s_cbranch_scc1 P_end
    v_lshlrev_b32 v6, 4, v0                ; source byte offset (row-major 8x896 B)
    global_load_dwordx4 v[24:27], v6, s[14:15]
    s_mov_b32 s40, 0x4924925               ; ceil(2^32/56)
    v_mul_hi_u32 v7, v0, s40               ; m
    v_mul_u32_u24 v8, 56, v7
    v_sub_u32 v8, v0, v8                   ; q : chunk = q>>2, sub = q&3
    v_lshrrev_b32 v9, 2, v8
    v_lshlrev_b32 v9, 9, v9
    v_lshl_add_u32 v9, v7, 6, v9
    v_and_b32 v8, 3, v8
    v_lshl_add_u32 v9, v8, 4, v9
    v_add_u32 v9, 0x%x, v9
    s_waitcnt vmcnt(0)
    global_store_dwordx4 v9, v[24:27], s[24:25]
    v_add_u32 v9, 8192, v9
    global_store_dwordx4 v9, v[24:27], s[24:25]
    ''' % XB_OFF)
    A.lab('P_end')
    A('s_endpgm')
def prep_desc():
    return '''.amdhsa_kernel %s
  .amdhsa_next_free_vgpr 136
  .amdhsa_next_free_sgpr 64
  .amdhsa_accum_offset 136
  .amdhsa_group_segment_fixed_size 0
  .amdhsa_kernarg_size 112
  .amdhsa_user_sgpr_count 2
  .amdhsa_user_sgpr_kernarg_segment_ptr 1
  .amdhsa_system_sgpr_workgroup_id_x 1
.end_amdhsa_kernel
''' % PNAME
```

```python
from common import *
from mainK import MF, dpp_red, D16
def xorred(A, op, regs, tmps):
    for sw in ('v_permlane16_swap_b32','v_permlane32_swap_b32'):
        for r,t in zip(regs,tmps): A('v_mov_b32 v%d, v%d'%(t,r))
        A('s_nop 1')
        for r,t in zip(regs,tmps): A('%s v%d, v%d'%(sw,r,t))
        A('s_nop 1')
        for r,t in zip(regs,tmps): A('%s v%d, v%d, v%d'%(op,r,r,t))
def role_A(Kx):
    A=Kx.A
    A.lab('R_A')
    XA=lambda mt,kk: 16+4*(mt*14+kk)
    A('''
    s_mul_i32 s28, s26, 28672
    s_add_u32 s24, s12, s28
    s_addc_u32 s25, s13, 0
    v_and_b32 v12, 15, v1
    v_lshrrev_b32 v11, 4, v1
    v_mul_u32_u24 v3, 896, v12
    v_lshl_add_u32 v3, v11, 4, v3
    v_add_u32 v4, 14336, v3
    v_lshlrev_b32 v2, 4, v1
    v_cmp_gt_u32 s[34:35], 12, v12
    v_cmp_eq_u32 s[36:37], 12, v12
    v_cmp_gt_u32 s[38:39], 3, v11
    v_cmp_eq_u32 s[40:41], 3, v11
    v_lshlrev_b32 v6, 10, v11
    v_lshl_add_u32 v6, v12, 2, v6
    v_add_u32 v7, 4096, v6
    v_lshlrev_b32 v8, 8, v12
    v_lshl_add_u32 v8, v11, 4, v8
    v_add_u32 v9, 4096, v8
    s_mov_b32 s42, 0xf149f2ca
    s_mov_b32 s43, 0x7149f2ca
    s_mov_b32 s44, 0x3f803f80
    s_mov_b32 s45, 0x358637bd              ; 1e-6
    s_mov_b32 s14, 0
    ''')
    for mt in range(2):
        for kk in range(14):
            A('global_load_dwordx4 %s, %s, s[24:25] offset:%d'%(vr(XA(mt,kk)),'v3' if mt==0 else 'v4',kk*64))
    A.lab('A1_loop')
    A('''
    s_lshl_b32 s27, s3, 2
    s_add_u32 s27, s27, s14                ; head
    s_mul_i32 s28, s27, 28672
    s_add_u32 s29, s28, 0x%x
    s_add_u32 s30, s4, s29
    s_addc_u32 s31, s5, 0
    s_add_u32 s29, s28, 0x%x
    s_add_u32 s32, s4, s29
    s_addc_u32 s33, s5, 0
    s_lshl_b32 s28, s27, 13
    s_add_u32 s28, s28, 0x%x
    s_add_u32 s16, s4, s28
    s_addc_u32 s17, s5, 0
    v_mov_b32 v5, v2
    '''%(WKP_OFF,WVA_OFF,KV_OFF))
    for q in range(28):
        A('global_load_dwordx4 %s, v5, s[30:31] offset:%d'%(ar(4*q),(q%4)*1024))
        A('global_load_dwordx4 %s, v5, s[32:33] offset:%d'%(ar(112+4*q),(q%4)*1024))
        if q%4==3: A('v_add_u32 v5, 4096, v5')
    A('s_waitcnt vmcnt(0)')
    for kk in range(14):
        for mat in range(2):
            for a in range(2):
                for mt in range(2):
                    d=vr(128+16*mat+4*(a*2+mt))
                    A('%s %s, %s, %s, %s'%(MF,d,vr(XA(mt,kk)),ar(112*mat+4*(a*14+kk)),'0' if kk==0 else d))
    A('s_nop 7')
    PK=lambda a,mt,r: 128+4*(a*2+mt)+r
    VV=lambda a,mt,r: 144+4*(a*2+mt)+r
    PH=lambda q,mt,r: 192+8*q+4*mt+r
    for mt in range(2):
        mx=[160+r for r in range(4)]; mn=[164+r for r in range(4)]
        for r in range(4):
            A('v_mov_b32 v168, s42\nv_mov_b32 v169, s43')
            A('v_cndmask_b32 v168, v168, v%d, s[34:35]'%PK(1,mt,r))
            A('v_cndmask_b32 v169, v169, v%d, s[34:35]'%PK(1,mt,r))
            A('v_max_f32 v%d, v%d, v168'%(mx[r],PK(0,mt,r)))
            A('v_min_f32 v%d, v%d, v169'%(mn[r],PK(0,mt,r)))
        for st in D16:
            for r in mx: A('v_max_f32_dpp v%d, v%d, v%d %s row_mask:0xf bank_mask:0xf'%(r,r,r,st))
            for r in mn: A('v_min_f32_dpp v%d, v%d, v%d %s row_mask:0xf bank_mask:0xf'%(r,r,r,st))
        for r in range(4):
            for a in range(2):
                A('v_sub_f32 v%d, v%d, v%d'%(PH(a,mt,r),PK(a,mt,r),mx[r]))
                A('v_sub_f32 v%d, v%d, v%d'%(PH(2+a,mt,r),mn[r],PK(a,mt,r)))
        for r in range(4):
            for q in range(4): A('v_exp_f32 v%d, v%d'%(PH(q,mt,r),PH(q,mt,r)))
        A('s_nop 0')
        for r in range(4):
            for q in (1,3): A('v_cndmask_b32 v%d, 0, v%d, s[34:35]'%(PH(q,mt,r),PH(q,mt,r)))
        for r in range(4):
            A('v_add_f32 v%d, v%d, v%d'%(mx[r],PH(0,mt,r),PH(1,mt,r)))
            A('v_add_f32 v%d, v%d, v%d'%(mn[r],PH(2,mt,r),PH(3,mt,r)))
        dpp_red(A,'v_add_f32',mx+mn,D16)
        for r in mx+mn: A('v_rcp_f32 v%d, v%d'%(r,r))
        A('s_nop 0')
        for r in range(4):
            for q in range(4): A('v_mul_f32 v%d, v%d, v%d'%(PH(q,mt,r),PH(q,mt,r),(mx if q<2 else mn)[r]))
    for q in range(4):
        for mt in range(2):
            for i in range(2): A('v_cvt_pk_bf16_f32 v%d, v%d, v%d'%(224+4*q+2*mt+i,PH(q,mt,2*i),PH(q,mt,2*i+1)))
    A('v_mov_b32 v168, s44')
    for a in range(2):
        for mt in range(2):
            for i in range(2):
                A('v_cvt_pk_bf16_f32 v%d, v%d, v%d'%(240+4*a+2*mt+i,VV(a,mt,2*i),VV(a,mt,2*i+1)))
    for i in range(4): A('v_cndmask_b32 v%d, v%d, v168, s[36:37]'%(244+i,244+i))
    A('s_nop 1')
    for a in range(2):
        for q in range(4):
            A('%s %s, %s, %s, 0'%(MF,vr(160+4*(a*4+q)),vr(240+4*a),vr(224+4*q)))
    A('s_nop 7')
    for a in range(2):
        for q in range(4):
            for r in range(4):
                A('global_atomic_add_f32 %s, v%d, s[16:17] offset:%d'%('v6' if a==0 else 'v7',160+4*(a*4+q)+r,r*256+q*64))
    A('''
    s_add_u32 s14, s14, 1
    s_cmp_lt_u32 s14, 4
    s_cbranch_scc1 A1_loop
    s_waitcnt vmcnt(0)
    s_barrier
    v_mov_b32 v5, 16
    s_cmp_lg_u32 s3, 0
    s_cbranch_scc1 A_bw
    v_mov_b32 v10, 1
    s_mov_b64 exec, 1
    global_atomic_add v5, v10, s[6:7]
    s_mov_b64 exec, -1
    A_bw:
    global_load_dword v10, v5, s[6:7] sc1
    s_waitcnt vmcnt(0)
    v_readfirstlane_b32 s28, v10
    s_cmp_ge_u32 s28, 64
    s_cbranch_scc1 A_bok
    s_sleep 8
    s_sub_u32 s15, s15, 1
    s_cbranch_scc1 M_end
    s_branch A_bw
    A_bok:
    s_mov_b32 s14, 0
    ''')
    A.lab('A2_loop')
    A('''
    s_lshl_b32 s27, s3, 2
    s_add_u32 s27, s27, s14                ; head
    s_mul_i32 s28, s27, 28672
    s_add_u32 s29, s28, 0x%x
    s_add_u32 s30, s4, s29
    s_addc_u32 s31, s5, 0
    s_lshl_b32 s28, s27, 13
    s_add_u32 s28, s28, 0x%x
    s_add_u32 s16, s4, s28
    s_addc_u32 s17, s5, 0
    v_mov_b32 v5, v2
    '''%(WQP_OFF,KV_OFF))
    for q in range(28):
        A('global_load_dwordx4 %s, v5, s[30:31] offset:%d'%(ar(4*q),(q%4)*1024))
        if q%4==3: A('v_add_u32 v5, 4096, v5')
    for dt in range(2):
        for kp in range(2):
            for hf in range(2):
                A('global_load_dwordx4 %s, %s, s[16:17] offset:%d sc1'%(vr(192+16*dt+8*kp+4*hf),'v8' if dt==0 else 'v9',kp*128+hf*64))
    A('s_waitcnt vmcnt(0)')
    for kk in range(14):
        for a in range(2):
            for mt in range(2):
                d=vr(128+4*(a*2+mt))
                A('%s %s, %s, %s, %s'%(MF,d,ar(4*(a*14+kk)),vr(XA(mt,kk)),'0' if kk==0 else d))
    for dt in range(2):
        for kp in range(2):
            for i in range(4):
                s=192+16*dt+8*kp+2*i
                A('v_cvt_pk_bf16_f32 v%d, v%d, v%d'%(224+4*(dt*2+kp)+i,s,s+1))
    EP=lambda a,mt,r: 144+8*mt+4*a+r
    EN=lambda a,mt,r: 160+8*mt+4*a+r
    for mt in range(2):
        A('v_max3_f32 v%d, v%d, v%d, v%d'%(176+mt,PK(1,mt,0),PK(1,mt,1),PK(1,mt,2)))
        A('v_max_f32 v%d, v%d, v%d'%(176+mt,176+mt,PK(1,mt,3)))
        A('v_min3_f32 v%d, v%d, v%d, v%d'%(178+mt,PK(1,mt,0),PK(1,mt,1),PK(1,mt,2)))
        A('v_min_f32 v%d, v%d, v%d'%(178+mt,178+mt,PK(1,mt,3)))
        A('v_mov_b32 v184, s42\nv_mov_b32 v185, s43')
        A('v_cndmask_b32 v%d, v184, v%d, s[38:39]'%(176+mt,176+mt))
        A('v_cndmask_b32 v%d, v185, v%d, s[38:39]'%(178+mt,178+mt))
        A('v_max3_f32 v%d, v%d, v%d, v%d'%(176+mt,176+mt,PK(0,mt,0),PK(0,mt,1)))
        A('v_max3_f32 v%d, v%d, v%d, v%d'%(176+mt,176+mt,PK(0,mt,2),PK(0,mt,3)))
        A('v_min3_f32 v%d, v%d, v%d, v%d'%(178+mt,178+mt,PK(0,mt,0),PK(0,mt,1)))
        A('v_min3_f32 v%d, v%d, v%d, v%d'%(178+mt,178+mt,PK(0,mt,2),PK(0,mt,3)))
    xorred(A,'v_max_f32',[176,177],[184,185])
    xorred(A,'v_min_f32',[178,179],[184,185])
    for mt in range(2):
        for a in range(2):
            for r in range(4):
                A('v_sub_f32 v%d, v%d, v%d'%(EP(a,mt,r),PK(a,mt,r),176+mt))
                A('v_sub_f32 v%d, v%d, v%d'%(EN(a,mt,r),178+mt,PK(a,mt,r)))
    for r in range(144,176): A('v_exp_f32 v%d, v%d'%(r,r))
    A('s_nop 0')
    for mt in range(2):
        for r in range(4):
            A('v_cndmask_b32 v%d, 0, v%d, s[38:39]'%(EP(1,mt,r),EP(1,mt,r)))
            A('v_cndmask_b32 v%d, 0, v%d, s[38:39]'%(EN(1,mt,r),EN(1,mt,r)))
    for mt in range(2):
        for E,d in ((EP,176+mt),(EN,178+mt)):
            A('v_add_f32 v%d, v%d, v%d'%(d,E(0,mt,0),E(0,mt,1)))
            for a,r in ((0,2),(0,3),(1,0),(1,1),(1,2),(1,3)):
                A('v_add_f32 v%d, v%d, v%d'%(d,d,E(a,mt,r)))
    xorred(A,'v_add_f32',[176,177,178,179],[184,185,186,187])
    for r in range(176,180): A('v_rcp_f32 v%d, v%d'%(r,r))
    A('s_nop 0')
    for mt in range(2):
        for a in range(2):
            for r in range(4):
                A('v_mul_f32 v%d, v%d, v%d'%(EP(a,mt,r),EP(a,mt,r),176+mt))
                A('v_mul_f32 v%d, v%d, v%d'%(EN(a,mt,r),EN(a,mt,r),178+mt))
    for kp,E in ((0,EP),(1,EN)):
        for mt in range(2):
            for a in range(2):
                for i in range(2):
                    A('v_cvt_pk_bf16_f32 v%d, v%d, v%d'%(240+4*(kp*2+mt)+2*a+i,E(a,mt,2*i),E(a,mt,2*i+1)))
    A('s_nop 1')
    for kp in range(2):
        for dt in range(2):
            for mt in range(2):
                d=vr(192+4*(dt*2+mt))
                A('%s %s, %s, %s, %s'%(MF,d,vr(224+4*(dt*2+kp)),vr(240+4*(kp*2+mt)),'0' if kp==0 else d))
    A('s_nop 7')
    for mt in range(2): A('v_cndmask_b32 v%d, 0, v%d, s[40:41]'%(176+mt,192+4*(2+mt)))
    xorred(A,'v_add_f32',[176,177],[184,185])
    for mt in range(2): A('v_add_f32 v%d, s45, v%d'%(176+mt,176+mt))
    for mt in range(2): A('v_rcp_f32 v%d, v%d'%(176+mt,176+mt))
    A('s_nop 0')
    for mt in range(2):
        for dt in range(2):
            for r in range(4):
                x=192+4*(dt*2+mt)+r
                A('v_mul_f32 v%d, v%d, v%d'%(x,x,176+mt))
        for dt in range(2):
            for i in range(2):
                x=192+4*(dt*2+mt)+2*i
                A('v_cvt_pk_bf16_f32 v%d, v%d, v%d'%(208+4*mt+2*dt+i,x,x+1))
    A('''
    s_lshl_b32 s28, s27, 11
    v_add_u32 v5, s28, v2
    ds_write_b128 v5, v[208:211]
    ds_write_b128 v5, v[212:215] offset:1024
    s_add_u32 s14, s14, 1
    s_cmp_lt_u32 s14, 4
    s_waitcnt lgkmcnt(0)
    s_cbranch_scc1 A2_loop
    s_barrier
    ''')
    for q in range(32): A('ds_read_b128 %s, v2 offset:%d'%(vr(16+4*q),q*1024))
    A('''
    ; out addr: (32a + (l&15))*1792 + g*8 ; + ct*32
    v_mul_u32_u24 v3, 1792, v12
    v_lshl_add_u32 v3, v11, 3, v3
    s_mul_i32 s28, s26, 57344
    s_mul_i32 s29, s3, 224
    s_add_u32 s28, s28, s29
    v_add_u32 v3, s28, v3
    v_add_u32 v4, 28672, v3
    s_mul_i32 s28, s3, 7*16384
    s_add_u32 s28, s28, 0x%x
    s_add_u32 s30, s4, s28
    s_addc_u32 s31, s5, 0
    v_mov_b32 v5, v2
    '''%WOT_OFF)
    def wl(q,reg):
        A('global_load_dwordx4 %s, v5, s[30:31] offset:%d'%(reg,(q%4)*1024))
        if q%4==3: A('v_add_u32 v5, 4096, v5')
    for q in range(64): wl(q,ar(4*q))
    A('s_waitcnt lgkmcnt(0)')
    for ct in range(7):
        if ct==4:
            for q in range(64,112): wl(q,ar(4*(q-64)))
        A('s_waitcnt vmcnt(0)')
        for h in range(16):
            for mt in range(2):
                d=vr(160+4*mt)
                A('%s %s, %s, %s, %s'%(MF,d,ar(4*((ct*16+h)%64)),vr(16+4*(h*2+mt)),'0' if h==0 else d))
        A('s_nop 7')
        for mt in range(2):
            A('v_cvt_pk_bf16_f32 v%d, v%d, v%d'%(168+2*mt,160+4*mt,161+4*mt))
            A('v_cvt_pk_bf16_f32 v%d, v%d, v%d'%(169+2*mt,162+4*mt,163+4*mt))
            A('global_store_dwordx2 %s, %s, s[10:11] offset:%d'%('v3' if mt==0 else 'v4',vr(168+2*mt,2),ct*32))
    A('s_branch M_end')
```

```python
import sys, importlib
sys.path.insert(0,'gen')
from common import *
import prep
OUT='concat_heads__linear_kernel_hedgehog__memory_aug_recurrent_mem_tr__prompt.s'
def build(out=OUT, main=True):
    ref=open(OUT+'.ref').read().split('\n')
    hdr=[l for l in ref if l.startswith(';') and '@launch' not in l and 'Override' not in l and 'grid=ceil' not in l]
    import mainK
    L=hdr+['; @launch kernel=%s grid=(%d,1,1) block=(448,1,1) lds=%d'%(PNAME,prep.PREP_GRID,prep.PREP_LDS),
           '; @launch kernel=%s grid=(%d,1,1) block=(256,1,1) lds=%d'%(KNAME,mainK.GRID,mainK.LDS),
           '.amdgcn_target "amdgcn-amd-amdhsa--gfx950"','.text']
    A=Asm(); prep.gen_prep(A)
    B=Asm(); B.n=1000; mainK.gen_main(B)
    txt='\n'.join(L)+'\n'+A.text()+B.text()+'.section .rodata,"a"\n.p2align 6\n'+prep.prep_desc()+'.p2align 6\n'+mainK.main_desc()
    open(out,'w').write(txt)
    print('wrote',out,len(txt))
if __name__=='__main__':
    build(*(sys.argv[1:2]))
```

```python
from common import *
from mainK import *
SM='v_smfmac_f32_16x16x64_bf16'
MF16='v_mfma_f32_16x16x16_bf16'
LDS_GPC=8192
LDS_TR=16384
def opG(q,n=4): return ar(4*q,n) if q<64 else vr(120+4*(q-64),n)
def poll_c(A):
    A('''
    s_mul_i32 s28, s3, 1792
    v_lshl_add_u32 v3, v1, 4, s28
    v_min_u32 v4, 47, v1
    v_lshl_add_u32 v4, v4, 4, s28
    v_add_u32 v4, 1024, v4
    v_and_b32 v10, 7, v1
    v_lshrrev_b32 v11, 4, v1
    v_lshlrev_b32 v5, 4, v1
    v_and_b32 v12, 8, v1
    v_cmp_eq_u32 vcc, 0, v12
    v_mov_b32 v6, 0xeeee
    v_mov_b32 v12, 0x4444
    v_cndmask_b32 v6, v6, v12, vcc
    ''')
def XA2_loads(A):
    for q in range(7):
        A('global_load_dwordx4 %s, v1, %s offset:%d'%(vr(72+4*q),'s[24:25]' if q<4 else 's[52:53]',(q%4)*1024))
def role_G(Kx):
    A=Kx.A
    A.lab('R_G')
    A('s_mov_b32 s26, s27')
    xcc_mode(A,'G')
    A('''
    s_lshl_b32 s28, s26, 2
    s_add_u32 s28, s28, s3
    s_mul_i32 s28, s28, %d
    s_add_u32 s30, s4, s28
    s_addc_u32 s31, s5, 0
    v_lshlrev_b32 v2, 4, v1
    '''%(98*1024))
    for q in range(98):
        A('global_load_dwordx4 %s, v2, s[30:31] offset:%d'%(opG(q),(q%4)*1024))
        if q%4==3: A('v_add_u32 v2, 4096, v2')
    xcc_wait(A,'G')
    poll_c(A)
    A('''
    ; v7 memS addr = 7w*256 + g*128 + (l&7)*16
    v_lshlrev_b32 v7, 7, v11
    v_lshl_add_u32 v7, v10, 4, v7
    v_add_u32 v7, s28, v7
    ; v8 memS t6 addr = (7w+6)*256 + (g>>1)*128 + (l&7)*16 + (g&1)*8
    v_lshrrev_b32 v44, 1, v11              ; g>>1
    v_and_b32 v45, 1, v11                  ; g&1
    v_lshlrev_b32 v8, 7, v44
    v_lshl_add_u32 v8, v10, 4, v8
    v_lshl_add_u32 v8, v45, 3, v8
    v_add_u32 v8, s28, v8
    v_add_u32 v8, 1536, v8
    ; v9 tr write addr = TR + w*3584 + (l&15)*32 + g*8
    v_and_b32 v12, 15, v1                  ; e
    s_mul_i32 s29, s3, 3584
    s_add_u32 s29, s29, %d
    v_lshlrev_b32 v9, 5, v12
    v_lshl_add_u32 v9, v11, 3, v9
    v_add_u32 v9, s29, v9
    ; r = e>>2, cq = e&3 ; base46 = (4(r>>1) + (r&1))*32 + cq*8 + TRw
    v_lshrrev_b32 v46, 3, v12
    v_lshlrev_b32 v46, 7, v46
    v_bfe_u32 v47, v12, 2, 1
    v_lshl_add_u32 v46, v47, 5, v46
    v_and_b32 v47, 3, v12
    v_lshl_add_u32 v46, v47, 3, v46
    v_add_u32 v46, s29, v46
    ; v0 tr read K32 = base + (g>>1)*512 + (g&1)*64
    v_lshl_add_u32 v0, v44, 9, v46
    v_lshl_add_u32 v0, v45, 6, v0
    ; v112 tr read t6 = base + 3072 + (g&1)*256 + (g>>1)*64
    v_lshl_add_u32 v112, v45, 8, v46
    v_lshl_add_u32 v112, v44, 6, v112
    v_add_u32 v112, 3072, v112
    ; partial write addr v10
    v_mul_u32_u24 v10, 208, v12
    v_lshl_add_u32 v10, v11, 4, v10
    s_mul_i32 s28, s3, 1664
    s_add_u32 s28, s28, %d
    v_add_u32 v10, s28, v10
    v_bfe_u32 v11, v1, 4, 1                ; row sel
    s_lshl_b32 s28, s3, 1
    v_add_u32 v11, s28, v11                ; m
    v_mul_u32_u24 v45, 208, v11
    v_add_u32 v45, %d, v45
    v_and_b32 v46, 3, v12
    v_lshl_add_u32 v47, v46, 3, v45
    v_add_u32 v47, 128, v47                ; mem read addr
    v_lshl_add_u32 v45, v12, 3, v45        ; x read addr
    ; PM x off = p*1024 + hb*128 + ((e>>1)&3)*256 + m*16 + (e>>3)*8 + (e&1)*4
    s_bfe_u32 s28, s26, 0x10001            ; p
    s_and_b32 s29, s26, 1                  ; hb
    s_lshl_b32 s32, s28, 10
    s_lshl_b32 s33, s29, 7
    s_add_u32 s32, s32, s33
    v_lshl_add_u32 v13, v11, 4, s32
    v_bfe_u32 v46, v12, 1, 2
    v_lshl_add_u32 v13, v46, 8, v13
    v_lshrrev_b32 v46, 3, v12
    v_lshl_add_u32 v13, v46, 3, v13
    v_and_b32 v46, 1, v12
    v_lshl_add_u32 v13, v46, 2, v13
    ; PM mem off = 2048 + (e>>1)*256 + p*128 + m*16 + hb*8 + (e&1)*4   (e<4)
    s_lshl_b32 s32, s28, 7
    s_lshl_b32 s33, s29, 3
    s_add_u32 s32, s32, s33
    s_add_u32 s32, s32, 2048
    v_lshl_add_u32 v14, v11, 4, s32
    v_lshl_add_u32 v14, v46, 2, v14
    v_bfe_u32 v46, v12, 1, 1
    v_lshl_add_u32 v14, v46, 8, v14
    v_mov_b32 v11, v45
    v_mov_b32 v12, v47
    ; v1 XA lane off = w*7168 + l*16
    s_mul_i32 s29, s3, 7168
    v_add_u32 v1, s29, v5
    s_mov_b32 s34, 0x000f000f              ; lanes e<4 (of 64)
    s_mov_b32 s35, 0x000f000f
    s_mov_b32 s36, 0x00ff00ff
    s_mov_b32 s37, 0x00ff00ff
    ; bases
    s_mov_b32 s14, 0
    s_add_u32 s16, s4, 0x%x
    s_addc_u32 s17, s5, 0
    s_lshr_b32 s28, s26, 2
    s_lshl_b32 s28, s28, 12
    s_add_u32 s28, s28, 0x%x
    s_add_u32 s18, s4, s28
    s_addc_u32 s19, s5, 0
    s_add_u32 s24, s4, 0x%x
    s_addc_u32 s25, s5, 0
    s_add_u32 s52, s24, 4096
    s_addc_u32 s53, s25, 0
    s_add_u32 s50, s18, 32768
    s_addc_u32 s51, s19, 0
    v_mov_b32 v2, -1
    s_cmp_eq_u32 s20, 1
    s_cbranch_scc0 G_nopw
    s_mov_b32 exec_hi, 0
    global_store_dword v13, v2, s[18:19]
    s_mov_b64 exec, 0x000f000f
    global_store_dword v14, v2, s[18:19]
    s_mov_b64 exec, -1
    G_nopw:
    '''%(LDS_TR,LDS_GPC,LDS_GPC,XB_OFF,XB_OFF+16384,XA2_OFF))
    XA2_loads(A)
    A.lab('G_loop')
    for i in range(28): A('v_mov_b32 v%d, 0'%(44+i))
    A(stamp(0))
    poll_mem(Kx,'G',stamp(1))
    A(stamp(2))
    L=LQ(A)
    for ks in range(7): L.issue('A%d'%ks,'ds_read_b128 %s, v5 offset:%d'%(vr(16+4*ks),ks*1024))
    acc=lambda t: 44+4*t
    TM=lambda t,ks: '%s %s, %s, %s, v6'%(SM,vr(acc(t)),vr(16+4*ks),opG(t*14+2*ks,8))
    def tr(t0,n):
        for t in range(t0,t0+n):
            a=acc(t)
            A('v_cvt_pk_bf16_f32 v%d, v%d, v%d'%(a,a,a+1)); A('v_cvt_pk_bf16_f32 v%d, v%d, v%d'%(a+1,a+2,a+3))
            L.issue('W%d'%t,'ds_write_b64 v9, %s offset:%d'%(vr(a,2),t*512))
        a=acc(t0); p=t0//2
        if n==2:
            L.issue('R%da'%p,'ds_read_b64_tr_b16 %s, v0 offset:%d'%(vr(100+12+2+0,2) if False else vr(TR[p],2),p*1024))
            L.issue('R%d'%p,'ds_read_b64_tr_b16 %s, v0 offset:%d'%(vr(TR[p]+2,2),p*1024+256))
        else:
            L.issue('R%d'%p,'ds_read_b64_tr_b16 %s, v112'%(vr(a+2,2)))
    TR={0:116,1:acc(0),2:acc(2)}
    MS={0:None}
    first=[True]
    def S(p,ms):
        if p<3:
            b=vr(TR[p])
            for jt in range(2): A('%s %s, %s, %s, %s'%(MF,vr(100+4*jt),vr(72+4*(3*jt+p)),b,'0' if first[0] else vr(100+4*jt)))
            A('%s %s, %s, %s, %s'%(MF,vr(108),vr(ms),b,'0' if first[0] else vr(108)))
        else:
            b=vr(acc(6)+2,2)
            for jt in range(2): A('%s %s, %s, %s, %s'%(MF16,vr(100+4*jt),vr(96+2*jt,2),b,vr(100+4*jt)))
            A('%s %s, %s, %s, %s'%(MF16,vr(108),vr(ms,2),b,vr(108)))
        first[0]=False
    for ks in range(7):
        L.need('A%d'%ks)
        A(TM(0,ks)); A(TM(1,ks))
    L.issue('M3','ds_read_b64 v[114:115], v8')
    for ks in range(7):
        A(TM(2,ks)); A(TM(3,ks))
        if ks==3:
            tr(0,2)
            L.issue('M0','ds_read_b128 %s, v7'%vr(acc(1)))
    for ks in range(7):
        A(TM(4,ks)); A(TM(5,ks))
        if ks==0: L.need('M0'); S(0,acc(1))
        if ks==3:
            tr(2,2)
            L.issue('M1','ds_read_b128 %s, v7 offset:512'%vr(acc(1)))
    for ks in range(7):
        A(TM(6,ks))
        if ks==0: L.need('M1'); S(1,acc(1))
        if ks==3:
            A('s_nop 0')
            tr(4,2)
            L.issue('M2','ds_read_b128 %s, v7 offset:1024'%vr(acc(3)))
    A(stamp(3))
    L.need('M2'); S(2,acc(3))
    A('s_nop 3'); tr(6,1)
    L.need('R3'); S(3,114)
    A('s_nop 5')
    for i in range(12):
        A('v_add_f32_dpp v%d, v%d, v%d row_ror:8 row_mask:0xf bank_mask:0xf'%(100+i,100+i,100+i))
    A('''
    s_mov_b64 exec, s[36:37]
    ds_write_b128 v10, v[100:103]
    ds_write_b128 v10, v[104:107] offset:64
    ds_write_b128 v10, v[108:111] offset:128
    s_mov_b64 exec, -1
    s_waitcnt lgkmcnt(0)
    ''')
    A(stamp(4))
    A('s_barrier')
    A(stamp(5))
    for ww in range(4): A('ds_read_b64 %s, v11 offset:%d'%(vr(16+2*ww,2),ww*1664))
    for ww in range(4): A('ds_read_b64 %s, v12 offset:%d'%(vr(24+2*ww,2),ww*1664))
    A('''
    s_add_u32 s24, s24, 28672
    s_addc_u32 s25, s25, 0
    s_add_u32 s52, s52, 28672
    s_addc_u32 s53, s53, 0
    s_waitcnt lgkmcnt(4)
    v_add_f32 v16, v16, v18
    v_add_f32 v17, v17, v19
    v_add_f32 v20, v20, v22
    v_add_f32 v21, v21, v23
    v_add_f32 v16, v16, v20
    v_add_f32 v17, v17, v21
    s_waitcnt lgkmcnt(0)
    v_add_f32 v24, v24, v26
    v_add_f32 v25, v25, v27
    v_add_f32 v28, v28, v30
    v_add_f32 v29, v29, v31
    v_add_f32 v24, v24, v28
    v_add_f32 v25, v25, v29
    v_max_f32 v32, v16, v17
    v_max3_f32 v32, v32, v24, v25
    ''')
    dpp_red(A,'v_max_f32',[32],D16)
    A('''
    v_sub_f32 v16, v16, v32
    v_sub_f32 v17, v17, v32
    v_sub_f32 v24, v24, v32
    v_sub_f32 v25, v25, v32
    v_exp_f32 v24, v24
    v_exp_f32 v25, v25
    v_exp_f32 v16, v16
    v_exp_f32 v17, v17
    v_add_f32 v33, v24, v25
    v_cndmask_b32 v33, 0, v33, s[34:35]
    v_add_f32 v34, v16, v17
    v_add_f32 v33, v33, v34
    ''')
    dpp_red(A,'v_add_f32',[33],D16)
    A('''
    v_rcp_f32 v33, v33
    s_mov_b32 exec_hi, 0
    v_mul_f32 v16, v16, v33
    v_mul_f32 v17, v17, v33
    v_mul_f32 v24, v24, v33
    v_mul_f32 v25, v25, v33
    v_cvt_pk_bf16_f32 v36, v16, v17
    v_cvt_pk_bf16_f32 v37, v24, v25
    s_cmp_eq_u32 s20, 1
    s_cbranch_scc0 G_slowst
    global_store_dword v13, v36, s[18:19]
    s_mov_b64 exec, 0x000f000f
    global_store_dword v14, v37, s[18:19]
    global_store_dword v14, v2, s[50:51]
    s_mov_b32 exec_lo, -1
    global_store_dword v13, v2, s[50:51]
    G_stdone:
    s_mov_b64 exec, -1
    ''')
    A(stamp(6))
    A('''
    s_add_u32 s14, s14, 1
    s_cmp_ge_u32 s14, %d
    s_cbranch_scc1 %s
    '''%(NCH,'G_fin' if DIAG else 'M_end'))
    XA2_loads(A)
    if DIAG:
        A('s_sub_u32 s14, s14, 1'); stamp_flush(A,28,'s_mov_b32 s58, s27'); A('s_add_u32 s14, s14, 1')
    A('''
    s_add_u32 s16, s16, 32768
    s_addc_u32 s17, s17, 0
    s_add_u32 s18, s18, 32768
    s_addc_u32 s19, s19, 0
    s_add_u32 s50, s50, 32768
    s_addc_u32 s51, s51, 0
    s_branch G_loop
    ''')
    if DIAG:
        A.lab('G_fin'); A('s_sub_u32 s14, s14, 1'); stamp_flush(A,28,'s_mov_b32 s58, s27'); A('s_branch M_end')
    Kx.ool('''
    G_slowst:
    global_store_dword v13, v36, s[18:19] sc1
    s_mov_b64 exec, 0x000f000f
    global_store_dword v14, v37, s[18:19] sc1
    s_branch G_stdone
    ''')

LDS_UR=8192
LDS_US=16384
def opU(q,n=4): return ar(4*q,n) if q<64 else vr(176+4*(q-64),n)
def role_U(Kx):
    A=Kx.A
    A.lab('R_U')
    A('s_sub_u32 s26, s27, 16                 ; u')
    xcc_mode(A,'U')
    A('''
    s_lshl_b32 s28, s26, 5
    s_lshl_b32 s29, s3, 2
    s_add_u32 s28, s28, s29
    s_mul_i32 s28, s28, 14336
    s_add_u32 s28, s28, 0x%x
    s_add_u32 s30, s4, s28
    s_addc_u32 s31, s5, 0
    v_lshlrev_b32 v2, 4, v1
    '''%UB_OFF)
    for c in range(2):
        A('v_add_u32 v5, %d, v2'%((16*c+3)*14336))
        for kk in range(14):
            A('global_load_dwordx4 %s, v5, s[30:31] offset:%d'%(vr(16+4*(kk*2+c)),(kk%4)*1024))
            if kk%4==3: A('v_add_u32 v5, 4096, v5')
    for hh in range(3):
        for c in range(2):
            A('v_add_u32 v5, %d, v2'%((16*c+hh)*14336))
            for kk in range(14):
                A('global_load_dwordx4 %s, v5, s[30:31] offset:%d'%(opU((hh*2+c)*14+kk),(kk%4)*1024))
                if kk%4==3: A('v_add_u32 v5, 4096, v5')
    A('''
    s_mul_i32 s28, s3, 28672
    s_add_u32 s28, s28, %d
    v_lshl_add_u32 v8, v1, 4, s28
    s_waitcnt vmcnt(63)
    '''%LDS_US)
    for q in range(28): A('ds_write_b128 v8, %s offset:%d'%(vr(16+4*q),q*1024))
    xcc_wait(A,'U')
    poll_c(A)
    A('''
    v_add_u32 v60, 16384, v5
    ; P mem off v7 = (g&1)*256 + (l&15)*16
    v_and_b32 v12, 1, v11
    v_and_b32 v13, 15, v1
    v_lshlrev_b32 v7, 8, v12
    v_lshl_add_u32 v7, v13, 4, v7
    ; reduce write addr v10 = UR + w*1152 + g*144 + m*16   (c: +576)
    v_mul_u32_u24 v12, 144, v11
    v_lshl_add_u32 v10, v10, 4, v12
    s_mul_i32 s28, s3, 1152
    s_add_u32 s28, s28, %d
    v_add_u32 v10, s28, v10
    ; reduce read addr v11 = UR + (w>>1)*576 + q*144 + m*16 + (w&1)*8 ; m=(l>>2)&7 q=l&3
    v_bfe_u32 v12, v1, 2, 3
    v_lshlrev_b32 v11, 4, v12
    v_and_b32 v13, 3, v1
    v_mul_u32_u24 v14, 144, v13
    v_add_u32 v11, v11, v14
    s_lshr_b32 s28, s3, 1
    s_mul_i32 s28, s28, 576
    s_and_b32 s29, s3, 1
    s_lshl_b32 s32, s29, 3
    s_add_u32 s28, s28, s32
    s_add_u32 s28, s28, %d
    v_add_u32 v11, s28, v11
    ; MEMG off v61 = u*512 + (2c + (q>>1))*128 + m*16 + (2(q&1)+hb)*4
    s_lshl_b32 s28, s26, 9
    s_lshr_b32 s32, s3, 1
    s_lshl_b32 s32, s32, 8
    s_add_u32 s32, s32, s28
    s_lshl_b32 s29, s29, 2
    s_add_u32 s32, s32, s29
    v_lshl_add_u32 v61, v12, 4, s32
    v_lshrrev_b32 v14, 1, v13
    v_lshl_add_u32 v61, v14, 7, v61
    v_and_b32 v14, 1, v13
    v_lshl_add_u32 v61, v14, 3, v61
    ; store off v12 = u*512 + w*128 + l*4
    s_lshl_b32 s29, s3, 7
    s_add_u32 s28, s28, s29
    v_lshl_add_u32 v12, v1, 2, s28
    v_mov_b32 v13, -1
    ; flag addr
    v_and_b32 v14, 1, v1
    s_lshl_b32 s28, s26, 1
    v_add_u32 v14, s28, v14
    v_lshlrev_b32 v14, 5, v14
    s_lshl_b32 s28, s3, 3
    s_add_u32 s28, s28, 0x%x
    v_add_u32 v14, s28, v14
    ; XA prefetch offset v2 = u*2048 + w*512 + lane*8
    s_lshl_b32 s28, s26, 11
    s_lshl_b32 s29, s3, 9
    s_add_u32 s28, s28, s29
    v_lshl_add_u32 v2, v1, 3, s28
    s_add_u32 s48, s4, 0x%x
    s_addc_u32 s49, s5, 0
    global_load_dwordx2 v[0:1], v2, s[48:49]
    s_add_u32 s48, s48, 28672
    s_addc_u32 s49, s49, 0
    s_mov_b32 s36, 0x00ff00ff
    s_mov_b32 s37, 0x00ff00ff
    s_mov_b32 s14, 0
    s_mov_b32 s22, 0                       ; seen
    s_add_u32 s16, s4, 0x%x
    s_addc_u32 s17, s5, 0
    s_lshl_b32 s28, s3, 12
    s_add_u32 s28, s28, 0x%x
    s_add_u32 s18, s4, s28
    s_addc_u32 s19, s5, 0
    s_add_u32 s38, s4, 0x%x                ; mem out base (s+1)
    s_addc_u32 s39, s5, 0
    s_add_u32 s40, s4, 0x%x                ; MEMG (s)
    s_addc_u32 s41, s5, 0
    s_lshl_b32 s28, s26, 15
    s_lshl_b32 s29, s3, 12
    s_add_u32 s28, s28, s29
    s_add_u32 s28, s28, 0x%x
    s_add_u32 s24, s4, s28                 ; YX base
    s_addc_u32 s25, s5, 0
    s_add_u32 s50, s38, 32768
    s_addc_u32 s51, s39, 0
    s_mov_b32 s23, 0                       ; deferred global store pending
    s_cmp_eq_u32 s20, 1
    s_cbranch_scc0 U_nopw
    s_mov_b32 exec_hi, 0
    global_store_dword v12, v13, s[38:39]
    s_mov_b64 exec, -1
    U_nopw:
    s_waitcnt lgkmcnt(0)
    '''%(LDS_UR,LDS_UR,YXF_OFF,XA2_OFF+28672,XB_OFF,XB_OFF+16384,XB_OFF+32768,XB_OFF+8192,YX_OFF))
    for i in range(32): A('v_mov_b32 v%d, 0'%(72+i))
    A.lab('U_loop')
    flag_check(Kx,'U','v14',40)
    A(stamp(0))
    poll_mem(Kx,'U',stamp(1))
    A(stamp(2))
    L=LQ(A)
    for ks in range(3): L.issue('A%d'%ks,'ds_read_b128 %s, v5 offset:%d'%(vr(16+4*ks),ks*1024))
    def sread(n):
        ks,c=n>>1,n&1; r=104+8*(n%3)
        L.issue('Sa%d'%n,'ds_read_b128 %s, v8 offset:%d'%(vr(r),(4*ks+c)*1024))
        L.issue('S%d'%n,'ds_read_b128 %s, v8 offset:%d'%(vr(r+4),(4*ks+2+c)*1024))
    for n in range(3): sread(n)
    A('''
    s_cmp_eq_u32 s23, 0
    s_cbranch_scc1 U_nodef
    s_mov_b32 exec_hi, 0
    global_store_dword v61, v9, s[40:41] sc1
    s_mov_b64 exec, -1
    U_nodef:
    ''')
    for hh in range(4):
        for c in range(2): A('global_load_dwordx4 %s, %s, s[24:25] offset:%d sc1'%(vr(128+4*(hh*2+c)),'v5' if c==0 else 'v60',hh*1024))
    A('global_load_dwordx2 v[0:1], v2, s[48:49]')
    for ks in range(7):
        L.need('A%d'%ks)
        for c in range(2):
            for hh in range(3):
                A('%s %s, %s, %s, v6'%(SM,vr(72+4*(hh*2+c)),vr(16+4*ks),opU((hh*2+c)*14+2*ks,8)))
            n=2*ks+c
            L.need('S%d'%n)
            A('%s %s, %s, %s, v6'%(SM,vr(72+4*(6+c)),vr(16+4*ks),vr(104+8*(n%3),8)))
            if c==0 and ks+3<=6: L.issue('A%d'%(ks+3),'ds_read_b128 %s, v5 offset:%d'%(vr(16+4*(ks+3)),(ks+3)*1024))
            if n+3<=13: sread(n+3)
    A(stamp(3))
    A('s_nop 2')
    for hh,c in ((0,0),(1,0),(2,0),(3,0),(0,1),(1,1),(2,1),(3,1)):
        q=hh*2+c; d=44+4*(2*(hh>>1)+c)+2*(hh&1)
        A('v_cvt_pk_bf16_f32 v%d, v%d, v%d'%(d,72+4*q,73+4*q))
        A('v_cvt_pk_bf16_f32 v%d, v%d, v%d'%(d+1,74+4*q,75+4*q))
    D=lambda hb,c: vr(160+8*hb+4*c)
    st=[]
    for p in range(2):
        st.append(dict(loads=['global_load_dwordx4 %s, v5, s[18:19] offset:%d sc1'%(vr(16+4*p),p*1024)],regs=range(16+4*p,20+4*p),
            body=['%s %s, %s, %s, %s'%(MF,D(hb,c),vr(128+4*((2*p+hb)*2+c)),vr(16+4*p),'0' if p==0 else D(hb,c)) for hb in (1,0) for c in range(2)]))
    st.append(dict(loads=['global_load_dwordx4 v[24:27], v7, s[18:19] offset:2048 sc1'],regs=range(24,28),
            body=['%s %s, %s, %s, %s'%(MF,D(hb,c),vr(44+4*(2*hb+c)),vr(24),D(hb,c)) for hb in (1,0) for c in range(2)]))
    if DIAG: st[0]['body'].insert(0,stamp(4)); st[2]['body'].insert(0,stamp(5))
    for i in range(32): A('v_mov_b32 v%d, 0'%(72+i))
    Kx.staged('Up',st,mid=1)
    A('s_nop 6')
    for c in range(2):
        for i in range(4):
            A('v_add_f32_dpp v%d, v%d, v%d row_ror:8 row_mask:0xf bank_mask:0xf'%(160+4*c+i,168+4*c+i,160+4*c+i))
    A('''
    s_mov_b64 exec, s[36:37]
    ds_write_b128 v10, v[160:163]
    ds_write_b128 v10, v[164:167] offset:576
    s_mov_b64 exec, -1
    s_mov_b32 exec_hi, 0
    s_waitcnt lgkmcnt(0)
    s_barrier
    ''')
    for ww in range(4): A('ds_read_b64 %s, v11 offset:%d'%(vr(28+2*ww,2),ww*1152))
    A('''
    s_add_u32 s40, s40, 32768
    s_addc_u32 s41, s41, 0
    s_cmp_eq_u32 s20, 1
    s_waitcnt lgkmcnt(2)
    v_add_f32 v28, v28, v30
    v_add_f32 v29, v29, v31
    s_waitcnt lgkmcnt(0)
    v_add_f32 v32, v32, v34
    v_add_f32 v33, v33, v35
    v_add_f32 v28, v28, v32
    v_add_f32 v29, v29, v33
    v_cvt_pk_bf16_f32 v28, v28, v29
    v_min_u32 v9, -2, v28
    s_cbranch_scc0 U_slowst
    global_store_dword v12, v9, s[38:39]
    global_store_dword v12, v13, s[50:51]
    U_stdone:
    s_mov_b32 s23, 1
    s_mov_b64 exec, -1
    ''')
    A(stamp(6))
    stamp_flush(A,62,'s_mov_b32 s58, s27')
    A('''
    s_add_u32 s14, s14, 1
    s_cmp_ge_u32 s14, %d
    s_cbranch_scc1 U_fin
    s_add_u32 s16, s16, 32768
    s_addc_u32 s17, s17, 0
    s_add_u32 s18, s18, 32768
    s_addc_u32 s19, s19, 0
    s_add_u32 s38, s38, 32768
    s_addc_u32 s39, s39, 0
    s_add_u32 s50, s50, 32768
    s_addc_u32 s51, s51, 0
    s_add_u32 s24, s24, %d
    s_addc_u32 s25, s25, 0
    s_cmp_ge_u32 s14, 62
    s_cbranch_scc1 U_loop
    s_add_u32 s48, s48, 28672
    s_addc_u32 s49, s49, 0
    s_branch U_loop
    U_fin:
    s_mov_b32 exec_hi, 0
    global_store_dword v61, v9, s[40:41] sc1
    s_mov_b64 exec, -1
    s_branch M_end
    '''%(NCH,28*16384))
    Kx.ool('''
    U_slowst:
    global_store_dword v12, v9, s[38:39] sc1
    s_branch U_stdone
    ''')
```

```python
KNAME = "concat_heads__linear_kernel_hedgehog__memory_aug_recurrent_mem_tr__prompt_kernel"
PNAME = "prep_kernel"

GT_OFF  = 0x0000000
GT_SZ   = 16*4*98*1024
UB_OFF  = 0x0640000
UB_SZ   = 28*16*14*1024
WQP_OFF = 0x0C80000
WKP_OFF = 0x0D00000
WVA_OFF = 0x0D80000
WOT_OFF = 0x0E00000
XB_OFF  = 0x0E80000
XB_STEP = 32768
XB_SZ   = 65*XB_STEP
ZR_OFF  = 0x1100000
YXF_OFF = ZR_OFF
PXF_OFF = ZR_OFF + 8192
KV_OFF  = ZR_OFF + 16384
ZR_SZ   = 16384 + 131072
PXX_OFF = 0x1200000
PXX_STR = 2560
PXX_SZ  = 64*16*PXX_STR
XA_OFF  = 0x1500000
XA_SZ   = 64*28672
XA2_OFF = 0x3400000
XO_OFF  = 0x3600000
YX_OFF  = 0x1800000
assert GT_OFF+GT_SZ <= UB_OFF and UB_OFF+UB_SZ <= WQP_OFF and XB_OFF+XB_SZ <= ZR_OFF and ZR_OFF+ZR_SZ <= PXX_OFF
assert PXX_OFF + PXX_SZ <= XA_OFF and XA_OFF+XA_SZ <= YX_OFF

assert YX_OFF+64*28*16384 <= XA2_OFF and XA2_OFF+XA_SZ <= XO_OFF and XO_OFF+XA_SZ <= 0x3800000
LOG2E = 1.4426950408889634
import struct
def f2u(x): return struct.unpack('<I', struct.pack('<f', x))[0]

class Asm:
    def __init__(self): self.L=[]; self.n=0
    def __call__(self, s, *a):
        for line in (s % a if a else s).split('\n'):
            self.L.append('    '+line.strip() if line.strip() and not line.strip().endswith(':') else line.strip())
    def lab(self, name): self.L.append(name+':')
    def newlab(self, p='L'):
        self.n+=1; return '%s_%d'%(p,self.n)
    def c(self, s): self.L.append('    ; '+s)
    def text(self): return '\n'.join(self.L)+'\n'

def vr(b,n=4): return 'v[%d:%d]'%(b,b+n-1) if n>1 else 'v%d'%b
def ar(b,n=4): return 'a[%d:%d]'%(b,b+n-1) if n>1 else 'a%d'%b
def sr(b,n=2): return 's[%d:%d]'%(b,b+n-1) if n>1 else 's%d'%b
```

```python
from common import *
GRID=256; LDS=131072
NCH=63
MF='v_mfma_f32_16x16x32_bf16'
ENABLE=dict(G=1,U=1,UX=1,GX=1,A=1,UO=1)
import os
DIAG=int(os.environ.get('DIAG','0'))
ST_OFF=0x3800000
def stamp(i): return 's_memrealtime s[%d:%d]'%(60+2*i,61+2*i) if DIAG else ''
def stamp_flush(A, vb, slot_expr):
    if not DIAG: return
    A('s_waitcnt lgkmcnt(0)')
    A(slot_expr)
    A('''s_lshl_b32 s58, s58, 2
    s_add_u32 s58, s58, s3
    s_lshl_b32 s58, s58, 6
    s_add_u32 s58, s58, s14
    s_lshl_b32 s58, s58, 5
    s_add_u32 s58, s58, 0x%x'''%ST_OFF)
    for i in range(8): A('v_mov_b32 v%d, s%d'%(vb+i,60+2*i))
    A('''v_mov_b32 v15, s58
    s_mov_b64 exec, 1
    global_store_dwordx4 v15, %s, s[4:5]
    global_store_dwordx4 v15, %s, s[4:5] offset:16
    s_mov_b64 exec, -1'''%(vr(vb),vr(vb+4)))

def opreg(q):
    return ar(4*q) if q<64 else vr(176+4*(q-64))

class K:
    def __init__(s,A): s.A=A; s.ool=Asm(); s.ool.n=5000
    def budget(s,O):
        O('s_sub_u32 s15, s15, 1\ns_cbranch_scc1 M_end')
    def check(s,O,regs):
        r=list(regs)
        assert len(r)==4
        O('v_max3_u32 v15, v%d, v%d, v%d'%tuple(r[:3]))
        O('v_max_u32 v15, v15, v%d'%r[3])
        O('v_cmp_eq_u32 vcc, -1, v15')
    def staged(s,name,stages,mid=3):
        A=s.A; O=s.ool
        n=len(stages); cnt=[len(st['loads']) for st in stages]
        after=lambda k: sum(cnt[k+1:])
        def issue(X,k):
            for j in range(k,n):
                for l in stages[j]['loads']: X(l)
        issue(A,0)
        A.lab(name+'_C0')
        A('s_waitcnt vmcnt(%d)'%after(0)); s.check(A,stages[0]['regs']); A('s_cbranch_vccnz %s_R0'%name)
        O.lab(name+'_R0'); s.budget(O); issue(O,0); O('s_branch %s_C0'%name)
        for k in range(n):
            A.lab('%s_S%d'%(name,k))
            body=stages[k]['body']
            m=min(mid,len(body))
            for b in body[:m]: A(b)
            if k+1<n:
                A('s_waitcnt vmcnt(%d)'%after(k+1)); s.check(A,stages[k+1]['regs'])
            for b in body[m:]: A(b)
            if k+1<n:
                A('s_cbranch_vccnz %s_R%d'%(name,k+1))
                O.lab('%s_R%d'%(name,k+1)); s.budget(O); issue(O,k+1)
                O('s_waitcnt vmcnt(%d)'%after(k+1)); s.check(O,stages[k+1]['regs'])
                O('s_cbranch_vccnz %s_R%d\ns_branch %s_S%d'%(name,k+1,name,k+1))

class LQ:
    def __init__(s,A): s.A=A; s.q=[]
    def issue(s,tag,ins): s.A(ins); s.q.append(tag)
    def need(s,tag):
        if tag not in s.q: return
        i=len(s.q)-1-s.q[::-1].index(tag)
        n=len(s.q)-1-i
        s.A('s_waitcnt lgkmcnt(%d)'%min(n,15))
        s.q=s.q[i+1:] if n<=15 else s.q[-15:]
LDS_T6=16384
def xa(jt,p): return vr(128+4*(3*jt+p)) if p<3 else vr(152+2*jt)
def XA_loads(A, b0='s[24:25]', b1='s[52:53]', va='v0'):
    for q in range(7):
        A('global_load_dwordx4 %s, %s, %s offset:%d'%(vr(128+4*q),va,b0 if q<4 else b1,(q%4)*1024))
def poll_consts(A):
    A('''
    s_mul_i32 s28, s3, 1792
    v_lshl_add_u32 v3, v1, 4, s28
    v_min_u32 v4, 47, v1
    v_lshl_add_u32 v4, v4, 4, s28
    v_add_u32 v4, 1024, v4
    v_and_b32 v10, 7, v1
    v_lshrrev_b32 v11, 4, v1
    v_lshlrev_b32 v7, 7, v11
    v_lshl_add_u32 v7, v10, 4, v7
    ''')
def poll_mem(Kx,name,st=None):
    A=Kx.A; O=Kx.ool
    A.lab(name+'_poll')
    A('''
    global_load_dwordx4 v[16:19], v3, s[16:17] sc1
    global_load_dwordx4 v[20:23], v4, s[16:17] sc1
    s_waitcnt vmcnt(0)
    v_max3_u32 v15, v16, v17, v18
    v_max3_u32 v24, v19, v20, v21
    v_max3_u32 v15, v15, v22, v23
    v_max_u32 v15, v15, v24
    v_cmp_eq_u32 vcc, -1, v15
    s_cbranch_vccnz %s_pr
    ds_write_b128 v3, v[16:19]
    ds_write_b128 v4, v[20:23]
    '''%name)
    if st: A(st)
    A('s_waitcnt lgkmcnt(0)\ns_barrier')
    O.lab(name+'_pr'); Kx.budget(O); O('s_branch %s_poll'%name)

def ld_resident(A, nres, vaddr='v2', base='s[30:31]', start=0):
    for q in range(nres):
        A('global_load_dwordx4 %s, %s, %s offset:%d'%(opreg(q),vaddr,base,(q%4)*1024))
        if q%4==3: A('v_add_u32 %s, 4096, %s'%(vaddr,vaddr))

def memload(kk, base='s[16:17]'):
    return 'global_load_dwordx4 %s, %s, %s offset:%d sc1'%(vr(16+4*kk),'v3' if kk<8 else 'v4',base,(kk%8)*512)

def dpp_red(A, op, regs, steps):
    for st in steps:
        if len(regs)<3: A('s_nop %d'%(2-len(regs)))
        for r in regs: A('%s_dpp v%d, v%d, v%d %s row_mask:0xf bank_mask:0xf'%(op,r,r,r,st))
D16=['quad_perm:[1,0,3,2]','quad_perm:[2,3,0,1]','row_half_mirror','row_mirror']
D8=D16[:3]

def load_G_weights(A):
    A('''
    s_lshl_b32 s28, s26, 2
    s_add_u32 s28, s28, s3
    s_mul_i32 s28, s28, %d
    s_add_u32 s30, s4, s28
    s_addc_u32 s31, s5, 0
    v_lshlrev_b32 v2, 4, v1
    v_add_u32 v5, %d, v2
    '''%(98*1024, 84*1024))
    for kk in range(14):
        A('global_load_dwordx4 %s, v5, s[30:31] offset:%d'%(vr(16+4*kk),(kk%4)*1024))
        if kk%4==3: A('v_add_u32 v5, 4096, v5')
    ld_resident(A,84)
    A('''
    s_mul_i32 s28, s3, 14336
    s_add_u32 s28, s28, 16384
    v_lshl_add_u32 v8, v1, 4, s28
    s_waitcnt vmcnt(63)
    ''')
    for kk in range(14): A('ds_write_b128 v8, %s offset:%d'%(vr(16+4*kk),kk*1024))

def T_body(kk, last_extra=None):
    b=[]
    if last_extra and kk==13: b+=last_extra
    for t in range(6):
        b.append('%s %s, %s, %s, %s'%(MF,vr(72+4*t),opreg(t*14+kk),vr(16+4*kk),'0' if kk==0 else vr(72+4*t)))
    if kk==0: b.append('s_waitcnt lgkmcnt(0)')
    elif kk>=7: b.append('s_waitcnt lgkmcnt(%d)'%(13-kk))
    b.append('%s %s, %s, %s, %s'%(MF,vr(96),vr(100+4*(kk%7)),vr(16+4*kk),'0' if kk==0 else vr(96)))
    if kk<7: b.append('ds_read_b128 %s, v8 offset:%d'%(vr(100+4*kk),(kk+7)*1024))
    return b
def T_cvt(A, dst):
    A('s_nop 0')
    for t in range(7):
        A('v_cvt_pk_bf16_f32 v%d, v%d, v%d'%(dst+2*t,72+4*t,73+4*t))
        A('v_cvt_pk_bf16_f32 v%d, v%d, v%d'%(dst+2*t+1,74+4*t,75+4*t))
    A('v_mov_b32 v%d, 0\nv_mov_b32 v%d, 0'%(dst+14,dst+15))
def t6_first(A):
    for kk in range(7): A('ds_read_b128 %s, v8 offset:%d'%(vr(100+4*kk),kk*1024))

def xcc_mode(A,k):
    A('''
    s_getreg_b32 s21, hwreg(HW_REG_XCC_ID)
    s_and_b32 s21, s21, 15
    s_add_u32 s21, s21, 1
    s_cmp_lg_u32 s3, 0
    s_cbranch_scc1 %s_nopub
    s_lshl_b32 s28, s27, 2
    s_add_u32 s28, s28, 64
    v_mov_b32 v10, s28
    v_mov_b32 v11, s21
    s_mov_b64 exec, 1
    global_store_dword v10, v11, s[6:7] sc1
    s_mov_b64 exec, -1
    %s_nopub:
    '''%(k,k))
def xcc_wait(A,k):
    A('''
    v_min_u32 v10, 29, v1
    v_lshlrev_b32 v10, 2, v10
    %s_xp:
    global_load_dword v11, v10, s[6:7] offset:64 sc1
    s_waitcnt vmcnt(0)
    v_cmp_eq_u32 vcc, 0, v11
    s_cbranch_vccz %s_xok
    s_sub_u32 s15, s15, 1
    s_cbranch_scc1 M_end
    s_branch %s_xp
    %s_xok:
    v_cmp_ne_u32 vcc, s21, v11
    s_cmp_eq_u64 vcc, 0
    s_cselect_b32 s20, 1, 0
    '''%(k,k,k,k))

def flag_check(Kx,name,vaddr,t):
    Kx.A('''
    s_cmp_gt_u32 s22, s14
    s_cbranch_scc0 %s_fl
    %s_flok:
    '''%(name,name))
    Kx.ool('''
    %s_fl:
    global_load_dwordx2 v[%d:%d], %s, s[4:5] sc1
    s_waitcnt vmcnt(0)
    v_lshlrev_b32 v%d, 1, v%d
    v_lshl_add_u32 v%d, v%d, 1, 1
    v_min_u32 v%d, v%d, v%d
    s_nop 0
    v_readlane_b32 s28, v%d, 0
    v_readlane_b32 s29, v%d, 1
    s_min_u32 s22, s28, s29
    s_cmp_gt_u32 s22, s14
    s_cbranch_scc1 %s_flok
    s_sub_u32 s15, s15, 1
    s_cbranch_scc1 M_end
    s_branch %s_fl
    '''%(name,t,t+1,vaddr,t,t,t+1,t+1,t,t,t+1,t,t,name,name))

from chain import role_G, role_U
from rolesX import role_UX, role_UO, role_GX

def gen_main(A):
    A.L.append('.globl %s\n.p2align 8\n.type %s,@function'%(KNAME,KNAME)); A.lab(KNAME)
    Kx=K(A)
    A('''
    s_cmp_ge_u32 s2, 256
    s_cbranch_scc1 M_end
    s_load_dwordx2 s[4:5], s[0:1], 104
    s_load_dwordx2 s[6:7], s[0:1], 96
    s_load_dwordx2 s[8:9], s[0:1], 32
    s_load_dwordx2 s[10:11], s[0:1], 88
    s_load_dwordx2 s[12:13], s[0:1], 0
    v_and_b32 v1, 63, v0
    v_lshrrev_b32 v2, 6, v0
    s_mov_b32 s15, 0x400000
    STAMP0
    v_readfirstlane_b32 s3, v2
    s_and_b32 s26, s2, 7
    s_lshr_b32 s27, s2, 3
    s_waitcnt lgkmcnt(0)
    s_cmp_lg_u32 s26, 0
    s_cbranch_scc1 M_other
    s_cmp_lt_u32 s27, 16
    s_cbranch_scc1 %s
    s_cmp_lt_u32 s27, 30
    s_cbranch_scc1 %s
    s_branch M_end
    M_other:
    s_mul_i32 s27, s27, 7
    s_add_u32 s26, s26, s27
    s_sub_u32 s26, s26, 1                  ; idx
    s_cmp_lt_u32 s26, 56
    s_cbranch_scc1 %s
    s_sub_u32 s26, s26, 56
    s_cmp_lt_u32 s26, 32
    s_cbranch_scc1 %s
    s_sub_u32 s26, s26, 32
    s_cmp_lt_u32 s26, 56
    s_cbranch_scc1 %s
    s_sub_u32 s26, s26, 56
    s_cmp_lt_u32 s26, 64
    s_cbranch_scc1 %s
    M_end:
    '''.replace('STAMP0','s_memrealtime s[56:57]' if DIAG else '')%tuple(('R_'+r if ENABLE[r] else 'M_end') for r in ('G','U','UX','GX','UO','A')))
    if DIAG:
        A('''
        s_cmp_ge_u32 s2, 256
        s_cbranch_scc1 M_end2
        s_memrealtime s[60:61]
        s_lshl_b32 s58, s2, 2
        s_add_u32 s58, s58, s3
        s_lshl_b32 s58, s58, 3
        s_add_u32 s58, s58, 0x%x
        s_waitcnt lgkmcnt(0)
        v_mov_b32 v0, s58
        v_mov_b32 v2, s56
        v_mov_b32 v3, s60
        s_mov_b64 exec, 1
        global_store_dwordx2 v0, v[2:3], s[4:5]
        M_end2:
        '''%(ST_OFF+0x100000))
    A('s_endpgm')
    role_G(Kx); role_U(Kx); role_UX(Kx); role_GX(Kx); role_UO(Kx)
    import roleA; roleA.role_A(Kx)
    A.L+=Kx.ool.L
def main_desc():
    return '''.amdhsa_kernel %s
  .amdhsa_next_free_vgpr 512
  .amdhsa_next_free_sgpr 102
  .amdhsa_accum_offset 256
  .amdhsa_group_segment_fixed_size 0
  .amdhsa_kernarg_size 112
  .amdhsa_user_sgpr_count 2
  .amdhsa_user_sgpr_kernarg_segment_ptr 1
  .amdhsa_system_sgpr_workgroup_id_x 1
.end_amdhsa_kernel
''' % KNAME
```

```python
from common import *
import os
DIAG=int(os.environ.get('DIAG','0'))
NB_GEMM=256; NB_INIT=64; NB_XA=256
PREP_GRID = NB_GEMM+NB_INIT+NB_XA
PREP_LDS = 256*240
def gen_prep(A):
    A.L.append('.globl %s\n.p2align 8\n.type %s,@function'%(PNAME,PNAME)); A.lab(PNAME)
    A('''
    s_cmp_ge_u32 s2, %d
    s_cbranch_scc1 P_end2
    PSTAMP
    s_load_dwordx4 s[8:11], s[0:1], 8      ; wqkv, w_phi
    s_load_dwordx2 s[12:13], s[0:1], 24    ; wo
    s_load_dwordx2 s[14:15], s[0:1], 40    ; mem0
    s_load_dwordx2 s[6:7], s[0:1], 32      ; B_x
    s_load_dwordx8 s[16:23], s[0:1], 48    ; Wq Wk Wv Wo
    s_load_dwordx2 s[24:25], s[0:1], 104   ; ws
    v_and_b32 v1, 63, v0                   ; lane
    v_lshrrev_b32 v2, 6, v0                ; wave
    v_and_b32 v3, 15, v1                   ; l&15
    v_lshrrev_b32 v4, 4, v1                ; g
    s_nop 0
    v_readfirstlane_b32 s3, v2             ; wave id
    s_waitcnt lgkmcnt(0)
    s_cmp_ge_u32 s2, %d
    s_cbranch_scc1 P_notgemm
    '''.replace('PSTAMP','s_memrealtime s[56:57]' if DIAG else '') % (PREP_GRID, NB_GEMM))
    A('''
    s_lshr_b32 s26, s2, 7                  ; mat
    s_lshr_b32 s27, s2, 3
    s_and_b32 s27, s27, 15                 ; h
    s_lshr_b32 s28, s2, 1
    s_and_b32 s28, s28, 3                  ; wq
    s_and_b32 s29, s2, 1                   ; half
    s_mul_i32 s30, s29, 7
    s_add_u32 s30, s30, s3                 ; kk
    s_cmp_eq_u32 s26, 0
    s_cselect_b32 s32, s16, s20
    s_cselect_b32 s33, s17, s21
    s_lshl_b32 s34, s27, 9                 ; h*512
    v_lshrrev_b32 v5, 5, v1                ; l>>5
    v_and_b32 v6, 31, v1
    s_lshl_b32 s35, s30, 5
    v_add_u32 v7, s35, v5
    v_lshlrev_b32 v7, 13, v7
    v_lshl_add_u32 v7, v6, 4, v7
    v_add_u32 v7, s34, v7
    s_mul_i32 s36, s3, 8448
    v_mul_u32_u24 v9, 528, v5
    v_lshl_add_u32 v9, v6, 4, v9
    v_add_u32 v9, s36, v9
    v_mul_u32_u24 v11, 528, v3
    v_lshl_add_u32 v11, v4, 4, v11
    v_add_u32 v10, s36, v11
    ''')
    for a in range(2):
        for i2 in range(8):
            rho=2*i2; row=8*(rho>>2)+4*a+(rho&3)
            A('v_add_u32 v8, %d, v7'%(row*8192))
            A('global_load_dwordx4 %s, v8, s[32:33]' % vr(16+32*a+4*i2))
    A('''
    s_cmp_eq_u32 s26, 0
    s_cbranch_scc0 P_uload
    s_mul_i32 s37, s28, 112
    s_lshl_b32 s38, s3, 4
    s_add_u32 s37, s37, s38
    v_add_u32 v8, s37, v5
    v_lshlrev_b32 v8, 13, v8
    v_lshl_add_u32 v8, v6, 4, v8
    v_add_u32 v8, s34, v8
    ''')
    for i in range(8):
        A('global_load_dwordx4 %s, v8, s[18:19]' % vr(80+4*i))
        if i<7: A('v_add_u32 v8, 16384, v8')
    A('''
    v_mov_b32 v12, v9                      ; B' LDS write addr (same shape as A' private region)
    s_branch P_stageA
    P_uload:
    ; Wo block [256 e][112 c]: thread tid: row e = tid/14 + 32i, piece = tid%%14
    s_mul_i32 s36, s27, 229376             ; h*256*896
    s_mul_i32 s39, s28, 224
    s_add_u32 s36, s36, s39                ; + c0*2
    s_mov_b32 s40, 0x12492493              ; ceil(2^32/14)
    v_mul_hi_u32 v13, v0, s40
    v_mul_u32_u24 v14, 14, v13
    v_sub_u32 v14, v0, v14
    v_mul_u32_u24 v8, 896, v13
    v_lshl_add_u32 v8, v14, 4, v8
    v_add_u32 v8, s36, v8
    v_mul_u32_u24 v12, 240, v13
    v_lshl_add_u32 v12, v14, 4, v12
    ''' % ())
    for i in range(8):
        A('global_load_dwordx4 %s, v8, s[22:23]' % vr(80+4*i))
        if i<7: A('v_add_u32 v8, 28672, v8')
    A.lab('P_stageA')
    if DIAG: A('s_memrealtime s[62:63]')
    for a in range(2):
        for i2 in range(8):
            A('s_waitcnt vmcnt(%d)'%(23-8*a-i2))
            if DIAG and a==0 and i2==0: A('s_memrealtime s[64:65]')
            A('ds_write_b128 v9, %s offset:%d' % (vr(16+32*a+4*i2), i2*1056))
        for ee in range(8):
            A('ds_read_b128 %s, v10 offset:%d' % (vr(16+32*a+4*ee), ee*64))
    A('''
    s_waitcnt lgkmcnt(0)
    s_barrier
    s_waitcnt vmcnt(0)
    ''')
    if DIAG: A('s_memrealtime s[66:67]')
    A('''
    s_cmp_eq_u32 s26, 0
    s_cbranch_scc0 P_ustage
    ''')
    for i in range(8): A('ds_write_b128 v12, %s offset:%d' % (vr(80+4*i), i*1056))
    A('''
    ; out base = GT + ((h*4+wq)*98 + kk)*1024 + lane*16
    s_lshl_b32 s37, s27, 2
    s_add_u32 s37, s37, s28
    s_mul_i32 s37, s37, 98
    s_add_u32 s37, s37, s30
    s_lshl_b32 s37, s37, 10
    v_lshl_add_u32 v8, v1, 4, s37
    s_mov_b32 s38, 0x%08x                  ; scale = log2e/16
    s_waitcnt lgkmcnt(0)
    s_barrier
    ''' % f2u(LOG2E/16))
    rdG=lambda t,ee: 'ds_read_b128 %s, v11 offset:%d' % (vr(80+4*ee), t*8448+ee*64)
    for ee in range(8): A(rdG(0,ee))
    for t in range(7):
        for ee in range(8):
            A('s_waitcnt lgkmcnt(%d)'%(7 if t<6 else 7-ee))
            A('v_mfma_f32_16x16x32_bf16 v[112:115], %s, %s, %s' % (vr(16+4*ee), vr(80+4*ee), '0' if ee==0 else 'v[112:115]'))
            A('v_mfma_f32_16x16x32_bf16 v[116:119], %s, %s, %s' % (vr(48+4*ee), vr(80+4*ee), '0' if ee==0 else 'v[116:119]'))
            if t<6: A(rdG(t+1,ee))
        A('s_nop 7\ns_nop 1')
        for r in range(8): A('v_mul_f32 v%d, s38, v%d' % (112+r,112+r))
        for r in range(4): A('v_cvt_pk_bf16_f32 v%d, v%d, v%d' % (120+r,112+2*r,113+2*r))
        A('global_store_dwordx4 v8, v[120:123], s[24:25]')
        A('v_add_u32 v8, %d, v8' % (14*1024))
        A('s_nop 1')
    A('s_branch P_end')
    A.lab('P_ustage')
    for i in range(8):
        A('ds_write_b128 v12, %s offset:%d' % (vr(80+4*i), i*7680))
    A('''
    ; tr read address: row = 8g' + (lam>>2) (+32ee +4), col byte = (16t + 4*(lam&3))*2
    v_lshrrev_b32 v7, 2, v3
    v_lshl_add_u32 v7, v4, 3, v7
    v_mul_u32_u24 v7, 240, v7
    v_and_b32 v9, 3, v3
    v_lshl_add_u32 v7, v9, 3, v7
    ; out base = UB + (((7wq+t)*16+h)*14+kk)*1024 + lane*16
    s_mul_i32 s37, s28, 7*16
    s_add_u32 s37, s37, s27
    s_mul_i32 s37, s37, 14
    s_add_u32 s37, s37, s30
    s_lshl_b32 s37, s37, 10
    s_add_u32 s37, s37, 0x%x
    v_lshl_add_u32 v8, v1, 4, s37
    s_waitcnt lgkmcnt(0)
    s_barrier
    ''' % UB_OFF)
    def rdU(t,ee):
        A('ds_read_b64_tr_b16 %s, v7 offset:%d' % (vr(80+4*ee,2), ee*32*240 + t*32))
        A('ds_read_b64_tr_b16 %s, v7 offset:%d' % (vr(82+4*ee,2), (ee*32+4)*240 + t*32))
    for ee in range(8): rdU(0,ee)
    for t in range(7):
        for ee in range(8):
            A('s_waitcnt lgkmcnt(%d)'%(14 if t<6 else 2*(7-ee)))
            A('v_mfma_f32_16x16x32_bf16 v[112:115], %s, %s, %s' % (vr(16+4*ee), vr(80+4*ee), '0' if ee==0 else 'v[112:115]'))
            A('v_mfma_f32_16x16x32_bf16 v[116:119], %s, %s, %s' % (vr(48+4*ee), vr(80+4*ee), '0' if ee==0 else 'v[116:119]'))
            if t<6: rdU(t+1,ee)
        A('s_nop 7\ns_nop 1')
        for r in range(4): A('v_cvt_pk_bf16_f32 v%d, v%d, v%d' % (120+r,112+2*r,113+2*r))
        A('global_store_dwordx4 v8, v[120:123], s[24:25]')
        A('v_add_u32 v8, %d, v8' % (16*14*1024))
        A('s_nop 1')
    A('s_branch P_end')
    A.lab('P_notgemm')
    A('s_sub_u32 s26, s2, %d'%NB_GEMM)
    A.lab('P_init')
    nthr = NB_INIT*448
    fill_n = (XB_SZ-16384)//16
    zero_n = ZR_SZ//16
    A('''
    s_cmp_ge_u32 s26, 64
    s_cbranch_scc1 P_xa
    s_mul_i32 s27, s26, 448
    v_add_u32 v5, s27, v0                  ; global thread idx
    v_mov_b32 v16, -1
    v_mov_b32 v17, -1
    v_mov_b32 v18, -1
    v_mov_b32 v19, -1
    v_mov_b32 v20, 0
    v_mov_b32 v21, 0
    v_mov_b32 v22, 0
    v_mov_b32 v23, 0
    ; SRD for fill region
    s_add_u32 s44, s24, 0x%x
    s_addc_u32 s45, s25, 0
    s_and_b32 s45, s45, 0xffff
    s_mov_b32 s46, %d
    s_mov_b32 s47, 0x00020000
    s_add_u32 s48, s24, 0x%x
    s_addc_u32 s49, s25, 0
    s_and_b32 s49, s49, 0xffff
    s_mov_b32 s50, %d
    s_mov_b32 s51, 0x00020000
    v_lshlrev_b32 v6, 4, v5
    buffer_store_dwordx4 v[20:23], v6, s[48:51], 0 offen
    ''' % (XB_OFF+16384, XB_SZ-16384, ZR_OFF, ZR_SZ))
    assert zero_n <= nthr
    for i in range((fill_n + nthr-1)//nthr):
        A('buffer_store_dwordx4 v[16:19], v6, s[44:47], 0 offen')
        A('v_add_u32 v6, %d, v6' % (nthr*16))
    A('''
    s_add_u32 s44, s24, 0x%x
    s_addc_u32 s45, s25, 0
    s_and_b32 s45, s45, 0xffff
    s_mov_b32 s46, %d
    v_lshlrev_b32 v6, 4, v5
    ''' % (PXX_OFF, PXX_SZ))
    for i in range((PXX_SZ//16 + nthr-1)//nthr):
        A('buffer_store_dwordx4 v[16:19], v6, s[44:47], 0 offen')
        A('v_add_u32 v6, %d, v6' % (nthr*16))
    A('''
    s_cmp_lg_u32 s26, 0
    s_cbranch_scc1 P_end
    v_lshlrev_b32 v6, 4, v0                ; source byte offset (row-major 8x896 B)
    global_load_dwordx4 v[24:27], v6, s[14:15]
    s_mov_b32 s40, 0x4924925               ; ceil(2^32/56)
    v_mul_hi_u32 v7, v0, s40               ; m
    v_mul_u32_u24 v8, 56, v7
    v_sub_u32 v8, v0, v8                   ; q : chunk = q>>2, sub = q&3
    v_lshrrev_b32 v9, 2, v8
    v_lshlrev_b32 v9, 9, v9
    v_lshl_add_u32 v9, v7, 4, v9
    v_and_b32 v8, 3, v8
    v_lshl_add_u32 v9, v8, 7, v9
    v_add_u32 v9, 0x%x, v9
    v_add_u32 v9, 8192, v9
    ; permuted: t = q56>>1 ; (q56&1)*8 + (d>>1)*4 + (d&1)*128
    v_mul_u32_u24 v10, 56, v7
    v_sub_u32 v10, v0, v10
    v_lshrrev_b32 v11, 1, v10
    v_lshlrev_b32 v11, 8, v11
    v_lshl_add_u32 v11, v7, 4, v11
    v_and_b32 v10, 1, v10
    v_lshl_add_u32 v11, v10, 3, v11
    v_add_u32 v11, 0x%x, v11
    s_waitcnt vmcnt(0)
    global_store_dwordx4 v9, v[24:27], s[24:25]
    global_store_dword v11, v24, s[24:25]
    global_store_dword v11, v25, s[24:25] offset:128
    global_store_dword v11, v26, s[24:25] offset:4
    global_store_dword v11, v27, s[24:25] offset:132
    ''' % (XB_OFF,XB_OFF))
    A('s_branch P_end')
    A.lab('P_xa')
    A('''
    s_sub_u32 s26, s26, 64                 ; b : seg = b>>2, w = b&3 ; q = wave
    s_lshr_b32 s27, s26, 2
    s_and_b32 s28, s26, 3
    s_cmp_ge_u32 s3, 3
    s_cselect_b32 s29, 1, 0                ; jt (q<6)
    s_mul_i32 s30, s29, 3
    s_sub_u32 s30, s3, s30                 ; p
    s_cmp_eq_u32 s3, 6
    s_cselect_b32 s29, 0, s29
    s_cselect_b32 s30, 3, s30
    s_cselect_b32 s31, 14336, 32           ; second piece delta
    ; src = (32seg + 16jt + j)*896 + (112w + 32p + 4g)*2
    s_lshl_b32 s32, s27, 5
    s_lshl_b32 s33, s29, 4
    s_add_u32 s32, s32, s33
    v_add_u32 v5, s32, v3
    v_mul_u32_u24 v5, 896, v5
    s_mul_i32 s33, s28, 224
    s_lshl_b32 s34, s30, 6
    s_add_u32 s33, s33, s34
    s_mov_b32 s38, s33
    v_lshl_add_u32 v5, v4, 3, v5
    v_add_u32 v5, s33, v5
    v_add_u32 v6, s31, v5
    global_load_dwordx2 v[16:17], v5, s[6:7]
    global_load_dwordx2 v[18:19], v6, s[6:7]
    s_mul_i32 s33, s26, 7168
    s_lshl_b32 s34, s3, 10
    s_add_u32 s33, s33, s34
    s_add_u32 s33, s33, 0x%x
    v_lshl_add_u32 v7, v1, 4, s33
    ; chain map: q<6: col = 16(7w+2p+(g>>1)) + 4d + 2(g&1) ; q=6: col = 16(7w+6) + 8(g&1) + 4d' + 2(g>>1), rows jt
    v_add_u32 v8, s32, v3
    v_mul_u32_u24 v8, 896, v8
    v_add_u32 v8, s38, v8
    v_lshrrev_b32 v9, 1, v4
    v_and_b32 v10, 1, v4
    s_cmp_eq_u32 s3, 6
    s_cselect_b32 s35, 16, 4
    s_cselect_b32 s36, 4, 32
    s_cselect_b32 s37, 14336, 16
    v_mul_u32_u24 v10, s35, v10
    v_mul_u32_u24 v9, s36, v9
    v_add3_u32 v8, v8, v9, v10
    v_add_u32 v9, s37, v8
    global_load_dword v20, v8, s[6:7]
    global_load_dword v21, v8, s[6:7] offset:8
    global_load_dword v22, v9, s[6:7]
    global_load_dword v23, v9, s[6:7] offset:8
    v_add_u32 v11, 0x%x, v7
    ; XO: op index n = 7w+q : jt = n/14, kk = n%%14 ; src = (32seg+16jt+j)*896 + kk*64 + g*16
    s_mul_i32 s35, s28, 7
    s_add_u32 s35, s35, s3
    s_cmp_ge_u32 s35, 14
    s_cselect_b32 s36, 16, 0
    s_cselect_b32 s37, 14, 0
    s_sub_u32 s35, s35, s37
    s_lshl_b32 s37, s27, 5
    s_add_u32 s37, s37, s36
    v_add_u32 v12, s37, v3
    v_mul_u32_u24 v12, 896, v12
    v_lshl_add_u32 v12, v4, 4, v12
    s_lshl_b32 s35, s35, 6
    v_add_u32 v12, s35, v12
    global_load_dwordx4 v[24:27], v12, s[6:7]
    v_add_u32 v13, 0x%x, v7
    s_waitcnt vmcnt(5)
    global_store_dwordx4 v7, v[16:19], s[24:25]
    s_waitcnt vmcnt(2)
    global_store_dwordx4 v11, v[20:23], s[24:25]
    s_waitcnt vmcnt(2)
    global_store_dwordx4 v13, v[24:27], s[24:25]
    ''' % (XA_OFF,XA2_OFF-XA_OFF,XO_OFF-XA_OFF))
    A.lab('P_end')
    if DIAG:
        A('''
        s_waitcnt vmcnt(0)
        s_memrealtime s[60:61]
        s_lshl_b32 s58, s2, 3
        s_add_u32 s58, s58, s3
        s_lshl_b32 s58, s58, 5
        s_add_u32 s58, s58, 0x3A00000
        s_waitcnt lgkmcnt(0)
        v_mov_b32 v0, s58
        v_mov_b32 v2, s56
        v_mov_b32 v3, s60
        v_mov_b32 v4, s62
        v_mov_b32 v5, s64
        v_mov_b32 v6, s66
        v_mov_b32 v7, s66
        s_mov_b64 exec, 1
        global_store_dwordx4 v0, v[2:5], s[24:25]
        global_store_dwordx2 v0, v[6:7], s[24:25] offset:16
        ''')
    A.lab('P_end2')
    A('s_endpgm')
def prep_desc():
    return '''.amdhsa_kernel %s
  .amdhsa_next_free_vgpr 128
  .amdhsa_next_free_sgpr 72
  .amdhsa_accum_offset 128
  .amdhsa_group_segment_fixed_size 0
  .amdhsa_kernarg_size 112
  .amdhsa_user_sgpr_count 2
  .amdhsa_user_sgpr_kernarg_segment_ptr 1
  .amdhsa_system_sgpr_workgroup_id_x 1
.end_amdhsa_kernel
''' % PNAME
```

```python
from common import *
from mainK import MF, dpp_red, D16
def xorred(A, op, regs, tmps):
    for sw in ('v_permlane16_swap_b32','v_permlane32_swap_b32'):
        for r,t in zip(regs,tmps): A('v_mov_b32 v%d, v%d'%(t,r))
        A('s_nop 1')
        for r,t in zip(regs,tmps): A('%s v%d, v%d'%(sw,r,t))
        A('s_nop 1')
        for r,t in zip(regs,tmps): A('%s v%d, v%d, v%d'%(op,r,r,t))
def A0(A):
    A('''
    s_load_dwordx4 s[80:83], s[0:1], 8
    s_load_dwordx2 s[84:85], s[0:1], 24
    v_and_b32 v3, 15, v1
    v_lshrrev_b32 v4, 4, v1
    s_lshl_b32 s46, s26, 2
    s_add_u32 s46, s46, s3
    s_waitcnt lgkmcnt(0)
    A0_loop:
    s_cmp_ge_u32 s46, 896
    s_cbranch_scc1 A0_notqk
    s_mov_b32 s27, s46
    s_cmp_ge_u32 s27, 448
    s_cselect_b32 s28, 1, 0                ; mat
    s_mul_i32 s29, s28, 448
    s_sub_u32 s29, s27, s29                ; rem
    s_mov_b32 s40, 0x12492493
    s_mul_hi_u32 s30, s29, s40             ; nt
    s_mul_i32 s31, s30, 14
    s_sub_u32 s31, s29, s31                ; kk
    s_lshr_b32 s32, s30, 1                 ; h
    s_and_b32 s33, s30, 1                  ; a
    s_lshl_b32 s34, s33, 4
    v_add_u32 v5, s34, v3                  ; f
    v_min_u32 v6, 27, v5
    s_mul_i32 s35, s32, 1568
    v_lshl_add_u32 v6, v6, 1, s35
    ''')
    for d in range(28):
        A('global_load_ushort v%d, v6, s[82:83] offset:%d' % (16+d, d*56))
    A('''
    s_lshl_b32 s36, s31, 5
    v_lshl_add_u32 v7, v4, 3, s36
    v_mul_u32_u24 v7, 2688, v7
    s_mul_i32 s37, s28, 896
    s_mul_i32 s38, s32, 56
    s_add_u32 s37, s37, s38
    v_add_u32 v7, s37, v7
    s_waitcnt vmcnt(0)
    ''')
    for d in range(28): A('v_lshlrev_b32 v%d, 16, v%d' % (16+d,16+d))
    for i in range(8):
        for q in range(7):
            A('global_load_dwordx2 %s, v7, s[80:81] offset:%d' % (vr(48+2*q,2), q*8))
        A('v_add_u32 v7, 2688, v7')
        A('v_mov_b32 v%d, 0' % (64+i))
        A('s_waitcnt vmcnt(0)')
        for dd in range(14):
            A('v_lshlrev_b32 v72, 16, v%d' % (48+dd))
            A('v_and_b32 v73, 0xffff0000, v%d' % (48+dd))
            A('v_fmac_f32 v%d, v72, v%d' % (64+i, 16+2*dd))
            A('v_fmac_f32 v%d, v73, v%d' % (64+i, 17+2*dd))
    A('s_mov_b32 s38, 0x%08x' % f2u(LOG2E))
    A('v_cmp_gt_u32 vcc, 28, v5')
    for i in range(8):
        A('v_mul_f32 v%d, s38, v%d' % (64+i,64+i))
        A('v_cndmask_b32 v%d, 0, v%d, vcc' % (64+i,64+i))
    for r in range(4): A('v_cvt_pk_bf16_f32 v%d, v%d, v%d' % (76+r,64+2*r,65+2*r))
    A('''
    s_lshl_b32 s37, s29, 10                ; rem*1024
    s_mul_i32 s38, s28, %d
    s_add_u32 s37, s37, s38
    s_add_u32 s37, s37, 0x%x
    v_lshl_add_u32 v8, v1, 4, s37
    global_store_dwordx4 v8, v[76:79], s[4:5] sc1
    s_branch A0_next
    ''' % (WKP_OFF-WQP_OFF, WQP_OFF))
    A.lab('A0_notqk')
    A('''
    s_cmp_ge_u32 s46, 1344
    s_cbranch_scc1 A0_notv
    s_sub_u32 s29, s46, 896
    s_mov_b32 s40, 0x12492493
    s_mul_hi_u32 s30, s29, s40             ; nt
    s_mul_i32 s31, s30, 14
    s_sub_u32 s31, s29, s31                ; kk
    s_lshr_b32 s32, s30, 1                 ; h
    s_and_b32 s33, s30, 1
    s_lshl_b32 s34, s33, 4
    v_add_u32 v5, s34, v3                  ; f
    v_min_u32 v6, 27, v5
    s_lshl_b32 s36, s31, 5
    v_lshl_add_u32 v7, v4, 3, s36          ; k0
    v_mul_u32_u24 v7, 2688, v7
    s_mul_i32 s38, s32, 56
    s_add_u32 s37, s38, 1792
    v_add_u32 v7, s37, v7
    v_lshl_add_u32 v7, v6, 1, v7
    ''')
    for i in range(8):
        A('global_load_ushort v%d, v7, s[80:81]' % (16+i))
        A('v_add_u32 v7, 2688, v7')
    A('s_waitcnt vmcnt(0)\nv_cmp_gt_u32 vcc, 28, v5')
    for r in range(4):
        A('v_lshl_or_b32 v%d, v%d, 16, v%d' % (76+r, 17+2*r, 16+2*r))
        A('v_cndmask_b32 v%d, 0, v%d, vcc' % (76+r,76+r))
    A('''
    s_lshl_b32 s37, s29, 10
    s_add_u32 s37, s37, 0x%x
    v_lshl_add_u32 v8, v1, 4, s37
    global_store_dwordx4 v8, v[76:79], s[4:5] sc1
    s_branch A0_next
    ''' % WVA_OFF)
    A.lab('A0_notv')
    A('''
    s_sub_u32 s29, s46, 1344
    s_lshr_b32 s30, s29, 4
    s_and_b32 s32, s29, 15
    s_mul_i32 s36, s32, 28*896
    s_lshl_b32 s37, s30, 5
    s_add_u32 s36, s36, s37
    v_lshl_add_u32 v7, v3, 1, s36
    v_mul_u32_u24 v9, 4*896, v4
    v_add_u32 v7, v7, v9                   ; d=4g
    v_min_u32 v10, 2, v4
    v_mul_u32_u24 v9, 4*896, v10
    v_lshl_add_u32 v11, v3, 1, s36
    v_add_u32 v11, v11, v9
    v_add_u32 v11, 16*896, v11             ; d=16+4g
    ''')
    for i in range(4):
        A('global_load_ushort v%d, v7, s[84:85] offset:%d' % (16+i, i*896))
        A('global_load_ushort v%d, v11, s[84:85] offset:%d' % (20+i, i*896))
    A('s_waitcnt vmcnt(0)\nv_cmp_gt_u32 vcc, 3, v4')
    for r in range(4):
        A('v_lshl_or_b32 v%d, v%d, 16, v%d' % (76+r, 17+2*r, 16+2*r))
    A('v_cndmask_b32 v78, 0, v78, vcc\nv_cndmask_b32 v79, 0, v79, vcc')
    A('''
    s_lshl_b32 s37, s29, 10
    s_add_u32 s37, s37, 0x%x
    v_lshl_add_u32 v8, v1, 4, s37
    global_store_dwordx4 v8, v[76:79], s[4:5] sc1
    s_branch A0_next
    ''' % WOT_OFF)
    A('''
    A0_next:
    s_add_u32 s46, s46, 256
    s_cmp_lt_u32 s46, 1792
    s_cbranch_scc1 A0_loop
    s_waitcnt vmcnt(0)
    s_barrier
    v_mov_b32 v5, 20
    s_cmp_lg_u32 s3, 0
    s_cbranch_scc1 A0_bw
    v_mov_b32 v10, 1
    s_mov_b64 exec, 1
    global_atomic_add v5, v10, s[6:7]
    s_mov_b64 exec, -1
    A0_bw:
    global_load_dword v10, v5, s[6:7] sc1
    s_waitcnt vmcnt(0)
    v_readfirstlane_b32 s28, v10
    s_cmp_ge_u32 s28, 64
    s_cbranch_scc1 A0_bok
    s_sleep 8
    s_sub_u32 s15, s15, 1
    s_cbranch_scc1 M_end
    s_branch A0_bw
    A0_bok:
    ''')
def role_A(Kx):
    A=Kx.A
    A.lab('R_A')
    A0(A)
    XA=lambda mt,kk: 16+4*(mt*14+kk)
    A('''
    s_mul_i32 s28, s26, 28672
    s_add_u32 s24, s12, s28
    s_addc_u32 s25, s13, 0
    v_and_b32 v12, 15, v1
    v_lshrrev_b32 v11, 4, v1
    v_mul_u32_u24 v3, 896, v12
    v_lshl_add_u32 v3, v11, 4, v3
    v_add_u32 v4, 14336, v3
    v_lshlrev_b32 v2, 4, v1
    v_cmp_gt_u32 s[34:35], 12, v12
    v_cmp_eq_u32 s[36:37], 12, v12
    v_cmp_gt_u32 s[38:39], 3, v11
    v_cmp_eq_u32 s[40:41], 3, v11
    v_lshlrev_b32 v6, 10, v11
    v_lshl_add_u32 v6, v12, 2, v6
    v_add_u32 v7, 4096, v6
    v_lshlrev_b32 v8, 8, v12
    v_lshl_add_u32 v8, v11, 4, v8
    v_add_u32 v9, 4096, v8
    s_mov_b32 s42, 0xf149f2ca
    s_mov_b32 s43, 0x7149f2ca
    s_mov_b32 s44, 0x3f803f80
    s_mov_b32 s45, 0x358637bd              ; 1e-6
    s_mov_b32 s14, 0
    ''')
    for mt in range(2):
        for kk in range(14):
            A('global_load_dwordx4 %s, %s, s[24:25] offset:%d'%(vr(XA(mt,kk)),'v3' if mt==0 else 'v4',kk*64))
    A.lab('A1_loop')
    A('''
    s_lshl_b32 s27, s3, 2
    s_add_u32 s27, s27, s14                ; head
    s_mul_i32 s28, s27, 28672
    s_add_u32 s29, s28, 0x%x
    s_add_u32 s30, s4, s29
    s_addc_u32 s31, s5, 0
    s_add_u32 s29, s28, 0x%x
    s_add_u32 s32, s4, s29
    s_addc_u32 s33, s5, 0
    s_lshl_b32 s28, s27, 13
    s_add_u32 s28, s28, 0x%x
    s_add_u32 s16, s4, s28
    s_addc_u32 s17, s5, 0
    v_mov_b32 v5, v2
    '''%(WKP_OFF,WVA_OFF,KV_OFF))
    for q in range(28):
        A('global_load_dwordx4 %s, v5, s[30:31] offset:%d'%(ar(4*q),(q%4)*1024))
        A('global_load_dwordx4 %s, v5, s[32:33] offset:%d'%(ar(112+4*q),(q%4)*1024))
        if q%4==3: A('v_add_u32 v5, 4096, v5')
    A('s_waitcnt vmcnt(0)')
    for kk in range(14):
        for mat in range(2):
            for a in range(2):
                for mt in range(2):
                    d=vr(128+16*mat+4*(a*2+mt))
                    A('%s %s, %s, %s, %s'%(MF,d,vr(XA(mt,kk)),ar(112*mat+4*(a*14+kk)),'0' if kk==0 else d))
    A('s_nop 7')
    PK=lambda a,mt,r: 128+4*(a*2+mt)+r
    VV=lambda a,mt,r: 144+4*(a*2+mt)+r
    PH=lambda q,mt,r: 192+8*q+4*mt+r
    for mt in range(2):
        mx=[160+r for r in range(4)]; mn=[164+r for r in range(4)]
        for r in range(4):
            A('v_mov_b32 v168, s42\nv_mov_b32 v169, s43')
            A('v_cndmask_b32 v168, v168, v%d, s[34:35]'%PK(1,mt,r))
            A('v_cndmask_b32 v169, v169, v%d, s[34:35]'%PK(1,mt,r))
            A('v_max_f32 v%d, v%d, v168'%(mx[r],PK(0,mt,r)))
            A('v_min_f32 v%d, v%d, v169'%(mn[r],PK(0,mt,r)))
        for st in D16:
            for r in mx: A('v_max_f32_dpp v%d, v%d, v%d %s row_mask:0xf bank_mask:0xf'%(r,r,r,st))
            for r in mn: A('v_min_f32_dpp v%d, v%d, v%d %s row_mask:0xf bank_mask:0xf'%(r,r,r,st))
        for r in range(4):
            for a in range(2):
                A('v_sub_f32 v%d, v%d, v%d'%(PH(a,mt,r),PK(a,mt,r),mx[r]))
                A('v_sub_f32 v%d, v%d, v%d'%(PH(2+a,mt,r),mn[r],PK(a,mt,r)))
        for r in range(4):
            for q in range(4): A('v_exp_f32 v%d, v%d'%(PH(q,mt,r),PH(q,mt,r)))
        A('s_nop 0')
        for r in range(4):
            for q in (1,3): A('v_cndmask_b32 v%d, 0, v%d, s[34:35]'%(PH(q,mt,r),PH(q,mt,r)))
        for r in range(4):
            A('v_add_f32 v%d, v%d, v%d'%(mx[r],PH(0,mt,r),PH(1,mt,r)))
            A('v_add_f32 v%d, v%d, v%d'%(mn[r],PH(2,mt,r),PH(3,mt,r)))
        dpp_red(A,'v_add_f32',mx+mn,D16)
        for r in mx+mn: A('v_rcp_f32 v%d, v%d'%(r,r))
        A('s_nop 0')
        for r in range(4):
            for q in range(4): A('v_mul_f32 v%d, v%d, v%d'%(PH(q,mt,r),PH(q,mt,r),(mx if q<2 else mn)[r]))
    for q in range(4):
        for mt in range(2):
            for i in range(2): A('v_cvt_pk_bf16_f32 v%d, v%d, v%d'%(224+4*q+2*mt+i,PH(q,mt,2*i),PH(q,mt,2*i+1)))
    A('v_mov_b32 v168, s44')
    for a in range(2):
        for mt in range(2):
            for i in range(2):
                A('v_cvt_pk_bf16_f32 v%d, v%d, v%d'%(240+4*a+2*mt+i,VV(a,mt,2*i),VV(a,mt,2*i+1)))
    for i in range(4): A('v_cndmask_b32 v%d, v%d, v168, s[36:37]'%(244+i,244+i))
    A('s_nop 1')
    for a in range(2):
        for q in range(4):
            A('%s %s, %s, %s, 0'%(MF,vr(160+4*(a*4+q)),vr(240+4*a),vr(224+4*q)))
    A('s_nop 7')
    for a in range(2):
        for q in range(4):
            for r in range(4):
                A('global_atomic_add_f32 %s, v%d, s[16:17] offset:%d'%('v6' if a==0 else 'v7',160+4*(a*4+q)+r,r*256+q*64))
    A('''
    s_add_u32 s14, s14, 1
    s_cmp_lt_u32 s14, 4
    s_cbranch_scc1 A1_loop
    s_waitcnt vmcnt(0)
    s_barrier
    v_mov_b32 v5, 16
    s_cmp_lg_u32 s3, 0
    s_cbranch_scc1 A_bw
    v_mov_b32 v10, 1
    s_mov_b64 exec, 1
    global_atomic_add v5, v10, s[6:7]
    s_mov_b64 exec, -1
    A_bw:
    global_load_dword v10, v5, s[6:7] sc1
    s_waitcnt vmcnt(0)
    v_readfirstlane_b32 s28, v10
    s_cmp_ge_u32 s28, 64
    s_cbranch_scc1 A_bok
    s_sleep 8
    s_sub_u32 s15, s15, 1
    s_cbranch_scc1 M_end
    s_branch A_bw
    A_bok:
    s_mov_b32 s14, 0
    ''')
    A.lab('A2_loop')
    A('''
    s_lshl_b32 s27, s3, 2
    s_add_u32 s27, s27, s14                ; head
    s_mul_i32 s28, s27, 28672
    s_add_u32 s29, s28, 0x%x
    s_add_u32 s30, s4, s29
    s_addc_u32 s31, s5, 0
    s_lshl_b32 s28, s27, 13
    s_add_u32 s28, s28, 0x%x
    s_add_u32 s16, s4, s28
    s_addc_u32 s17, s5, 0
    v_mov_b32 v5, v2
    '''%(WQP_OFF,KV_OFF))
    for q in range(28):
        A('global_load_dwordx4 %s, v5, s[30:31] offset:%d'%(ar(4*q),(q%4)*1024))
        if q%4==3: A('v_add_u32 v5, 4096, v5')
    for dt in range(2):
        for kp in range(2):
            for hf in range(2):
                A('global_load_dwordx4 %s, %s, s[16:17] offset:%d sc1'%(vr(192+16*dt+8*kp+4*hf),'v8' if dt==0 else 'v9',kp*128+hf*64))
    A('s_waitcnt vmcnt(0)')
    for kk in range(14):
        for a in range(2):
            for mt in range(2):
                d=vr(128+4*(a*2+mt))
                A('%s %s, %s, %s, %s'%(MF,d,ar(4*(a*14+kk)),vr(XA(mt,kk)),'0' if kk==0 else d))
    for dt in range(2):
        for kp in range(2):
            for i in range(4):
                s=192+16*dt+8*kp+2*i
                A('v_cvt_pk_bf16_f32 v%d, v%d, v%d'%(224+4*(dt*2+kp)+i,s,s+1))
    EP=lambda a,mt,r: 144+8*mt+4*a+r
    EN=lambda a,mt,r: 160+8*mt+4*a+r
    for mt in range(2):
        A('v_max3_f32 v%d, v%d, v%d, v%d'%(176+mt,PK(1,mt,0),PK(1,mt,1),PK(1,mt,2)))
        A('v_max_f32 v%d, v%d, v%d'%(176+mt,176+mt,PK(1,mt,3)))
        A('v_min3_f32 v%d, v%d, v%d, v%d'%(178+mt,PK(1,mt,0),PK(1,mt,1),PK(1,mt,2)))
        A('v_min_f32 v%d, v%d, v%d'%(178+mt,178+mt,PK(1,mt,3)))
        A('v_mov_b32 v184, s42\nv_mov_b32 v185, s43')
        A('v_cndmask_b32 v%d, v184, v%d, s[38:39]'%(176+mt,176+mt))
        A('v_cndmask_b32 v%d, v185, v%d, s[38:39]'%(178+mt,178+mt))
        A('v_max3_f32 v%d, v%d, v%d, v%d'%(176+mt,176+mt,PK(0,mt,0),PK(0,mt,1)))
        A('v_max3_f32 v%d, v%d, v%d, v%d'%(176+mt,176+mt,PK(0,mt,2),PK(0,mt,3)))
        A('v_min3_f32 v%d, v%d, v%d, v%d'%(178+mt,178+mt,PK(0,mt,0),PK(0,mt,1)))
        A('v_min3_f32 v%d, v%d, v%d, v%d'%(178+mt,178+mt,PK(0,mt,2),PK(0,mt,3)))
    xorred(A,'v_max_f32',[176,177],[184,185])
    xorred(A,'v_min_f32',[178,179],[184,185])
    for mt in range(2):
        for a in range(2):
            for r in range(4):
                A('v_sub_f32 v%d, v%d, v%d'%(EP(a,mt,r),PK(a,mt,r),176+mt))
                A('v_sub_f32 v%d, v%d, v%d'%(EN(a,mt,r),178+mt,PK(a,mt,r)))
    for r in range(144,176): A('v_exp_f32 v%d, v%d'%(r,r))
    A('s_nop 0')
    for mt in range(2):
        for r in range(4):
            A('v_cndmask_b32 v%d, 0, v%d, s[38:39]'%(EP(1,mt,r),EP(1,mt,r)))
            A('v_cndmask_b32 v%d, 0, v%d, s[38:39]'%(EN(1,mt,r),EN(1,mt,r)))
    for mt in range(2):
        for E,d in ((EP,176+mt),(EN,178+mt)):
            A('v_add_f32 v%d, v%d, v%d'%(d,E(0,mt,0),E(0,mt,1)))
            for a,r in ((0,2),(0,3),(1,0),(1,1),(1,2),(1,3)):
                A('v_add_f32 v%d, v%d, v%d'%(d,d,E(a,mt,r)))
    xorred(A,'v_add_f32',[176,177,178,179],[184,185,186,187])
    for r in range(176,180): A('v_rcp_f32 v%d, v%d'%(r,r))
    A('s_nop 0')
    for mt in range(2):
        for a in range(2):
            for r in range(4):
                A('v_mul_f32 v%d, v%d, v%d'%(EP(a,mt,r),EP(a,mt,r),176+mt))
                A('v_mul_f32 v%d, v%d, v%d'%(EN(a,mt,r),EN(a,mt,r),178+mt))
    for kp,E in ((0,EP),(1,EN)):
        for mt in range(2):
            for a in range(2):
                for i in range(2):
                    A('v_cvt_pk_bf16_f32 v%d, v%d, v%d'%(240+4*(kp*2+mt)+2*a+i,E(a,mt,2*i),E(a,mt,2*i+1)))
    A('s_nop 1')
    for kp in range(2):
        for dt in range(2):
            for mt in range(2):
                d=vr(192+4*(dt*2+mt))
                A('%s %s, %s, %s, %s'%(MF,d,vr(224+4*(dt*2+kp)),vr(240+4*(kp*2+mt)),'0' if kp==0 else d))
    A('s_nop 7')
    for mt in range(2): A('v_cndmask_b32 v%d, 0, v%d, s[40:41]'%(176+mt,192+4*(2+mt)))
    xorred(A,'v_add_f32',[176,177],[184,185])
    for mt in range(2): A('v_add_f32 v%d, s45, v%d'%(176+mt,176+mt))
    for mt in range(2): A('v_rcp_f32 v%d, v%d'%(176+mt,176+mt))
    A('s_nop 0')
    for mt in range(2):
        for dt in range(2):
            for r in range(4):
                x=192+4*(dt*2+mt)+r
                A('v_mul_f32 v%d, v%d, v%d'%(x,x,176+mt))
        for dt in range(2):
            for i in range(2):
                x=192+4*(dt*2+mt)+2*i
                A('v_cvt_pk_bf16_f32 v%d, v%d, v%d'%(208+4*mt+2*dt+i,x,x+1))
    A('''
    s_lshl_b32 s28, s27, 11
    v_add_u32 v5, s28, v2
    ds_write_b128 v5, v[208:211]
    ds_write_b128 v5, v[212:215] offset:1024
    s_add_u32 s14, s14, 1
    s_cmp_lt_u32 s14, 4
    s_waitcnt lgkmcnt(0)
    s_cbranch_scc1 A2_loop
    s_barrier
    ''')
    for q in range(32): A('ds_read_b128 %s, v2 offset:%d'%(vr(16+4*q),q*1024))
    A('''
    ; out addr: (32a + (l&15))*1792 + g*8 ; + ct*32
    v_mul_u32_u24 v3, 1792, v12
    v_lshl_add_u32 v3, v11, 3, v3
    s_mul_i32 s28, s26, 57344
    s_mul_i32 s29, s3, 224
    s_add_u32 s28, s28, s29
    v_add_u32 v3, s28, v3
    v_add_u32 v4, 28672, v3
    s_mul_i32 s28, s3, 7*16384
    s_add_u32 s28, s28, 0x%x
    s_add_u32 s30, s4, s28
    s_addc_u32 s31, s5, 0
    v_mov_b32 v5, v2
    '''%WOT_OFF)
    def wl(q,reg):
        A('global_load_dwordx4 %s, v5, s[30:31] offset:%d'%(reg,(q%4)*1024))
        if q%4==3: A('v_add_u32 v5, 4096, v5')
    for q in range(64): wl(q,ar(4*q))
    A('s_waitcnt lgkmcnt(0)')
    for ct in range(7):
        if ct==4:
            for q in range(64,112): wl(q,ar(4*(q-64)))
        A('s_waitcnt vmcnt(0)')
        for h in range(16):
            for mt in range(2):
                d=vr(160+4*mt)
                A('%s %s, %s, %s, %s'%(MF,d,ar(4*((ct*16+h)%64)),vr(16+4*(h*2+mt)),'0' if h==0 else d))
        A('s_nop 7')
        for mt in range(2):
            A('v_cvt_pk_bf16_f32 v%d, v%d, v%d'%(168+2*mt,160+4*mt,161+4*mt))
            A('v_cvt_pk_bf16_f32 v%d, v%d, v%d'%(169+2*mt,162+4*mt,163+4*mt))
            A('global_store_dwordx2 %s, %s, s[10:11] offset:%d'%('v3' if mt==0 else 'v4',vr(168+2*mt,2),ct*32))
    A('s_branch M_end')
```

```python
from common import *
from mainK import *
LDS_GP=16384+57344
assert XA_OFF==0x1500000 and XO_OFF==0x3600000

def ld_U56(A):
    A('''
    s_lshl_b32 s28, s26, 4
    s_lshl_b32 s29, s3, 2
    s_add_u32 s28, s28, s29
    s_mul_i32 s28, s28, 14336
    s_add_u32 s28, s28, 0x%x
    s_add_u32 s30, s4, s28
    s_addc_u32 s31, s5, 0
    v_lshlrev_b32 v2, 4, v1
    '''%UB_OFF)
    ld_resident(A,56)

def role_UX(Kx):
    A=Kx.A
    A.lab('R_UX')
    A('s_and_b32 s23, s26, 1\ns_lshr_b32 s26, s26, 1')
    ld_U56(A)
    A('''
    v_lshlrev_b32 v8, 4, v1
    v_add_u32 v8, 4096, v8
    v_add_u32 v9, 8192, v8
    v_add_u32 v10, 16384, v8
    v_add_u32 v11, 24576, v8
    s_mul_i32 s28, s23, 28672
    s_add_u32 s28, s28, 0x%x
    s_add_u32 s24, s4, s28
    s_addc_u32 s25, s5, 0
    '''%XO_OFF)
    xl=lambda kk,jt: 'global_load_dwordx4 %s, v%d, s[24:25] offset:%d'%(vr(16+4*(kk*2+jt)),8+(jt*14+kk)//8,((jt*14+kk)%8)*1024-4096)
    for kk in range(14):
        for jt in range(2): A(xl(kk,jt))
    A('''
    v_lshlrev_b32 v5, 4, v1                ; YX lane off
    s_lshl_b32 s28, s26, 14
    s_lshl_b32 s29, s3, 12
    s_add_u32 s28, s28, s29
    s_mul_i32 s29, s23, %d
    s_add_u32 s28, s28, s29
    s_add_u32 s28, s28, 0x%x
    s_add_u32 s18, s4, s28                 ; YX base
    s_addc_u32 s19, s5, 0
    s_lshl_b32 s28, s26, 5
    s_lshl_b32 s29, s3, 3
    s_add_u32 s28, s28, s29
    s_lshl_b32 s29, s23, 2
    s_add_u32 s28, s28, s29
    s_add_u32 s28, s28, 0x%x
    v_mov_b32 v6, s28                      ; flag off
    s_mov_b32 s14, 0
    s_add_u32 s24, s24, 57344
    s_addc_u32 s25, s25, 0
    s_waitcnt vmcnt(0)
    '''%(28*16384,YX_OFF,YXF_OFF))
    A.lab('X1_loop')
    for kk in range(14):
        A('s_waitcnt vmcnt(31)')
        for jt in range(2):
            for hh in range(4):
                d=vr(128+4*(hh*2+jt))
                A('%s %s, %s, %s, %s'%(MF,d,vr(16+4*(kk*2+jt)),ar(4*(hh*14+kk)),'0' if kk==0 else d))
        for jt in range(2): A(xl(kk,jt))
    A('s_nop 4')
    for hh in range(4):
        for jt in range(2):
            q=hh*2+jt
            A('v_cvt_pk_bf16_f32 v%d, v%d, v%d'%(160+2*q,128+4*q,129+4*q))
            A('v_cvt_pk_bf16_f32 v%d, v%d, v%d'%(161+2*q,130+4*q,131+4*q))
    for hh in range(4):
        A('global_store_dwordx4 v5, %s, s[18:19] offset:%d sc1'%(vr(160+4*hh),hh*1024))
    A('''
    v_mov_b32 v7, s14
    s_waitcnt vmcnt(33)
    s_mov_b64 exec, 1
    global_store_dword v6, v7, s[4:5] sc1
    s_mov_b64 exec, -1
    s_add_u32 s14, s14, 1
    s_add_u32 s18, s18, %d
    s_addc_u32 s19, s19, 0
    s_cmp_ge_u32 s14, 31
    s_cbranch_scc1 X1_noinc
    s_add_u32 s24, s24, 57344
    s_addc_u32 s25, s25, 0
    X1_noinc:
    s_cmp_lt_u32 s14, 32
    s_cbranch_scc1 X1_loop
    v_mov_b32 v7, 32
    s_waitcnt vmcnt(0)
    s_mov_b64 exec, 1
    global_store_dword v6, v7, s[4:5] sc1
    s_mov_b64 exec, -1
    s_branch M_end
    '''%(2*28*16384))

def role_UO(Kx):
    A=Kx.A
    A.lab('R_UO')
    A('s_and_b32 s14, s26, 1\ns_lshr_b32 s26, s26, 1')
    ld_U56(A)
    A('''
    v_lshlrev_b32 v5, 4, v1                ; YX lane off
    v_and_b32 v10, 7, v1
    v_lshrrev_b32 v11, 4, v1               ; g
    v_and_b32 v12, 15, v1
    v_lshlrev_b32 v3, 4, v10
    v_lshl_add_u32 v3, v11, 7, v3
    v_add_u32 v4, 4096, v3
    ; P x offs v6..v9 : (l&15)*64 + g*16 + hh*2560
    v_lshlrev_b32 v6, 6, v12
    v_lshl_add_u32 v6, v11, 4, v6
    v_add_u32 v7, 2560, v6
    v_add_u32 v8, 5120, v6
    v_add_u32 v9, 7680, v6
    ; P mem off v10 = (g>>1)*5120 + 2048 + (l&15)*16 + (g&1)*8
    v_lshrrev_b32 v13, 1, v11
    v_mul_u32_u24 v10, 5120, v13
    v_lshl_add_u32 v10, v12, 4, v10
    v_and_b32 v13, 1, v11
    v_lshl_add_u32 v10, v13, 3, v10
    v_add_u32 v10, 2048, v10
    ; reduce write addr v11 = c*528 + w*128 + g*16
    v_mul_u32_u24 v13, 528, v12
    v_lshl_add_u32 v11, v11, 4, v13
    s_lshl_b32 s28, s3, 7
    v_add_u32 v11, s28, v11
    ; reduce read addr v12 = 2cp*528 + q*4 ; q = tid>>3, cp = tid&7
    v_lshrrev_b32 v13, 3, v0
    v_and_b32 v14, 7, v0
    v_mul_u32_u24 v12, 1056, v14
    v_lshl_add_u32 v12, v13, 2, v12
    ; out off v13 = q*1792 + 896 + ct*32 + cp*4
    v_mul_u32_u24 v13, 1792, v13
    v_lshl_add_u32 v13, v14, 2, v13
    s_lshl_b32 s28, s26, 5
    s_add_u32 s28, s28, 896
    v_add_u32 v13, s28, v13
    ; flag addr v14
    s_lshl_b32 s28, s26, 5
    s_lshl_b32 s29, s3, 3
    s_add_u32 s28, s28, s29
    s_add_u32 s28, s28, 0x%x
    v_mov_b32 v14, s28
    s_mov_b32 s34, 0
    s_mov_b32 s35, -1
    s_mov_b32 s22, 0
    s_mov_b32 s42, 0
    s_lshl_b32 s28, s14, 15
    s_add_u32 s28, s28, 0x%x
    s_add_u32 s16, s4, s28
    s_addc_u32 s17, s5, 0
    s_lshl_b32 s28, s14, 4
    s_lshl_b32 s29, s3, 2
    s_add_u32 s28, s28, s29
    s_mul_i32 s28, s28, %d
    s_add_u32 s28, s28, 0x%x
    s_add_u32 s18, s4, s28
    s_addc_u32 s19, s5, 0
    s_mul_i32 s28, s14, %d
    s_add_u32 s38, s10, s28
    s_addc_u32 s39, s11, 0
    s_lshl_b32 s28, s26, 14
    s_lshl_b32 s29, s3, 12
    s_add_u32 s28, s28, s29
    s_mul_i32 s29, s14, %d
    s_add_u32 s28, s28, s29
    s_add_u32 s28, s28, 0x%x
    s_add_u32 s40, s4, s28                 ; YX base
    s_addc_u32 s41, s5, 0
    '''%(YXF_OFF,XB_OFF+8192,PXX_STR,PXX_OFF,32*1792,28*16384,YX_OFF))
    A.lab('X2_loop')
    flag_check(Kx,'X2','v14',92)
    for hh in range(4): A('global_load_dwordx4 %s, v5, s[40:41] offset:%d sc1'%(vr(72+4*hh),hh*1024))
    st=[]
    for kk in range(14):
        b=['%s %s, %s, %s, %s'%(MF,vr(128+4*hh),vr(16+4*kk),ar(4*(hh*14+kk)),'0' if kk==0 else vr(128+4*hh)) for hh in range(4)]
        if kk==13:
            b.append('s_nop 4')
            for hh in range(4):
                b.append('v_cvt_pk_bf16_f32 v%d, v%d, v%d'%(92+2*hh,128+4*hh,129+4*hh))
                b.append('v_cvt_pk_bf16_f32 v%d, v%d, v%d'%(93+2*hh,130+4*hh,131+4*hh))
            for a in range(2):
                for i in range(2):
                    b.append('v_cndmask_b32 v%d, v%d, v%d, s[34:35]'%(88+2*a+i,92+2*a+i,92+2*(a+2)+i))
        st.append(dict(loads=[memload(kk)],regs=range(16+4*kk,20+4*kk),body=b))
    for qt in range(2):
        for hh in range(4):
            r=176+20*qt+4*hh
            st.append(dict(loads=['global_load_dwordx4 %s, v%d, s[18:19] offset:%d sc1'%(vr(r),6+hh,qt*1024)],regs=range(r,r+4),
                body=['%s %s, %s, %s, %s'%(MF,vr(144+4*qt),vr(r),vr(72+4*hh),'0' if hh==0 else vr(144+4*qt))]))
        r=192+20*qt
        st.append(dict(loads=['global_load_dwordx2 %s, v10, s[18:19] offset:%d sc1'%(vr(r+2*a,2),a*2560+qt*256) for a in range(2)],regs=range(r,r+4),
                body=['%s %s, %s, %s, %s'%(MF,vr(144+4*qt),vr(r),vr(88),vr(144+4*qt))]))
    Kx.staged('Xm',st,mid=1)
    A('''
    v_add_u32 v60, s42, v11
    v_add_u32 v61, s42, v12
    s_nop 6
    ds_write_b128 v60, v[144:147]
    ds_write_b128 v60, v[148:151] offset:64
    s_waitcnt lgkmcnt(0)
    s_barrier
    ''')
    for ww in range(4): A('ds_read2_b32 %s, v61 offset0:%d offset1:%d'%(vr(62+2*ww,2),ww*32,ww*32+132))
    A('''
    s_waitcnt lgkmcnt(0)
    v_add_f32 v62, v62, v64
    v_add_f32 v63, v63, v65
    v_add_f32 v66, v66, v68
    v_add_f32 v67, v67, v69
    v_add_f32 v62, v62, v66
    v_add_f32 v63, v63, v67
    v_cvt_pk_bf16_f32 v100, v62, v63
    global_store_dword v13, v100, s[38:39]
    s_add_u32 s14, s14, 2
    s_cmp_ge_u32 s14, 64
    s_cbranch_scc1 M_end
    s_add_u32 s16, s16, 65536
    s_addc_u32 s17, s17, 0
    s_add_u32 s18, s18, %d
    s_addc_u32 s19, s19, 0
    s_add_u32 s38, s38, %d
    s_addc_u32 s39, s39, 0
    s_add_u32 s40, s40, %d
    s_addc_u32 s41, s41, 0
    s_xor_b32 s42, s42, 8448
    s_branch X2_loop
    '''%(32*PXX_STR,64*1792,2*28*16384))

def role_GX(Kx):
    A=Kx.A
    A.lab('R_GX')
    A('s_and_b32 s14, s26, 1\ns_lshr_b32 s26, s26, 1')
    load_G_weights(A)
    A('''
    ; v5 memA off = 7w*256 + (g>>1)*128 + (l&7)*16 + (g&1)*8 ; v7 XA lane off
    v_and_b32 v10, 7, v1
    v_lshrrev_b32 v11, 4, v1
    v_lshrrev_b32 v12, 1, v11
    v_lshlrev_b32 v5, 7, v12
    v_lshl_add_u32 v5, v10, 4, v5
    v_and_b32 v12, 1, v11
    v_lshl_add_u32 v5, v12, 3, v5
    s_mul_i32 s28, s3, 1792
    v_add_u32 v5, s28, v5
    s_mul_i32 s28, s3, 7168
    v_lshl_add_u32 v7, v1, 4, s28
    v_add_u32 v9, 4096, v7
    ; xB offsets v3/v4 (qt0/qt1): (l&15)*896 + g*16
    v_and_b32 v12, 15, v1
    v_lshrrev_b32 v11, 4, v1
    v_lshlrev_b32 v3, 4, v1
    v_add_u32 v3, 4096, v3
    v_add_u32 v4, 8192, v3
    v_add_u32 v6, 16384, v3
    v_add_u32 v158, 24576, v3
    ; partial write addr v10 = LDS_GP + w*6656 + (l&15)*208 + g*16
    v_mul_u32_u24 v10, 208, v12
    v_lshl_add_u32 v10, v11, 4, v10
    s_mul_i32 s28, s3, 6656
    s_add_u32 s28, s28, %d
    v_add_u32 v10, s28, v10
    ; softmax: q = tid>>3, e = tid&7 ; v11 = LDS_GP + q*208 + e*16 ; v2 = mem addr
    v_lshrrev_b32 v12, 3, v0
    v_and_b32 v13, 7, v0
    v_mul_u32_u24 v11, 208, v12
    v_add_u32 v11, %d, v11
    v_lshl_add_u32 v2, v13, 2, v11
    v_add_u32 v2, 128, v2
    v_lshl_add_u32 v11, v13, 4, v11
    v_lshlrev_b32 v14, 2, v13
    v_cmp_le_u32 s[44:45], v14, v12
    v_add_u32 v14, 1, v14
    v_cmp_le_u32 s[46:47], v14, v12
    v_add_u32 v14, 1, v14
    v_cmp_le_u32 s[48:49], v14, v12
    v_add_u32 v14, 1, v14
    v_cmp_le_u32 s[50:51], v14, v12
    ; store offs: x: q*64 + (e&3)*16 + (e>>2)*8 -> v1 ; mem: 2048 + q*16 + e*2 -> v0
    v_lshlrev_b32 v14, 6, v12
    v_and_b32 v15, 3, v13
    v_lshl_add_u32 v14, v15, 4, v14
    v_lshrrev_b32 v15, 2, v13
    v_lshl_add_u32 v14, v15, 3, v14
    v_lshlrev_b32 v12, 4, v12
    v_lshl_add_u32 v12, v13, 1, v12
    v_add_u32 v0, 2048, v12
    v_mov_b32 v1, v14
    v_mov_b32 v156, 0
    v_mov_b32 v157, 0
    ; bases
    s_mul_i32 s28, s14, 28672
    s_add_u32 s28, s28, 0x1500000
    s_add_u32 s38, s4, s28
    s_addc_u32 s39, s5, 0
    s_lshl_b32 s28, s14, 15
    s_add_u32 s28, s28, 0x%x
    s_add_u32 s16, s4, s28
    s_addc_u32 s17, s5, 0
    s_lshl_b32 s28, s14, 4
    s_add_u32 s28, s28, s26
    s_mul_i32 s28, s28, %d
    s_add_u32 s28, s28, 0x%x
    s_add_u32 s18, s4, s28
    s_addc_u32 s19, s5, 0
    s_mul_i32 s28, s14, 28672
    s_add_u32 s28, s28, 0x3600000
    s_add_u32 s24, s4, s28
    s_addc_u32 s25, s5, 0
    s_add_u32 s52, s24, 57344              ; next iteration x base
    s_addc_u32 s53, s25, 0
    s_mov_b32 s42, 0                       ; lds buffer toggle
    s_mov_b32 s43, 0xf149f2ca              ; -1e30
    s_waitcnt lgkmcnt(0)
    '''%(LDS_GP,LDS_GP,XB_OFF+8192,PXX_STR,PXX_OFF))
    xb=lambda kk,qt,base='s[24:25]': 'global_load_dwordx4 %s, %s, %s offset:%d'%(vr(16+4*kk),['v3','v4','v6','v158'][(qt*14+kk)//8],base,((qt*14+kk)%8)*1024-4096)
    for kk in range(14): A(xb(kk,0))
    def xA_loads(A):
        for q in range(7):
            A('global_load_dwordx4 %s, %s, s[38:39] offset:%d'%(vr(128+4*q),'v7' if q<4 else 'v9',(q%4)*1024))
    xA_loads(A)
    A('s_waitcnt vmcnt(0)')
    A.lab('GX_loop')
    A('v_add_u32 v12, s42, v10')
    for qt in range(2):
        t6_first(A)
        for kk in range(14):
            if qt==1: A('s_waitcnt vmcnt(13)')
            for b in T_body(kk): A(b)
            A(xb(kk,1) if qt==0 else xb(kk,0,'s[52:53]'))
        tb=160 if qt==0 else 100
        T_cvt(A,tb)
        if qt==0:
            A('s_waitcnt vmcnt(14)')
            for p in range(4):
                A('%s %s, %s, %s, %s'%(MF,vr(72),xa(0,p),vr(tb+4*p),'0' if p==0 else vr(72)))
            A('s_nop 7\nds_write_b128 v12, v[72:75]\ns_nop 1')
        else:
            for p in range(4):
                for jt in range(2):
                    A('%s %s, %s, %s, %s'%(MF,vr(88+4*jt),xa(jt,p),vr(tb+4*p),'0' if p==0 else vr(88+4*jt)))
    A('v_mov_b32 v86, 0\nv_mov_b32 v87, 0')
    memA=['global_load_dwordx2 %s, v5, s[16:17] offset:%d sc1'%(vr(72+2*idx,2),idx*256) for idx in range(7)]
    st=[]
    for p in range(4):
        b=['%s %s, %s, %s, %s'%(MF,vr(116+4*qt),vr(72+4*p),vr((160 if qt==0 else 100)+4*p),'0' if p==0 else vr(116+4*qt)) for qt in range(2)]
        st.append(dict(loads=memA[2*p:2*p+2],regs=range(72+4*p,76+4*p),body=b))
    Kx.staged('Gxm',st,mid=1)
    A('''
    ds_write_b128 v12, v[88:91] offset:%d
    ds_write_b128 v12, v[92:95] offset:%d
    v_add_u32 v13, s42, v11
    v_add_u32 v14, s42, v2
    s_nop 3
    ds_write_b128 v12, v[116:119] offset:128
    ds_write_b128 v12, v[120:123] offset:%d
    '''%(16*208,16*208+64,16*208+128))
    A('''s_cmp_ge_u32 s14, 62
    s_cselect_b32 s28, 0, 57344
    s_add_u32 s38, s38, s28
    s_addc_u32 s39, s39, 0''')
    xA_loads(A)
    A('s_waitcnt lgkmcnt(0)\ns_barrier')
    for ww in range(4): A('ds_read_b128 %s, v13 offset:%d'%(vr(72+4*ww),ww*6656))
    for ww in range(4): A('ds_read_b32 v%d, v14 offset:%d'%(88+ww,ww*6656))
    A('v_mov_b32 v92, s43\ns_waitcnt lgkmcnt(0)')
    for i in range(4):
        A('v_add_f32 v%d, v%d, v%d'%(72+i,72+i,76+i))
        A('v_add_f32 v%d, v%d, v%d'%(80+i,80+i,84+i))
        A('v_add_f32 v%d, v%d, v%d'%(72+i,72+i,80+i))
        A('v_cndmask_b32 v%d, v92, v%d, s[%d:%d]'%(72+i,72+i,44+2*i,45+2*i))
    A('''
    v_add_f32 v88, v88, v89
    v_add_f32 v90, v90, v91
    v_add_f32 v88, v88, v90
    v_max3_f32 v92, v72, v73, v74
    v_max3_f32 v92, v92, v75, v88
    ''')
    dpp_red(A,'v_max_f32',[92],D8)
    for r in (72,73,74,75,88): A('v_sub_f32 v%d, v%d, v92'%(r,r))
    for r in (72,73,74,75,88): A('v_exp_f32 v%d, v%d'%(r,r))
    A('''
    s_nop 0
    v_add_f32 v93, v72, v73
    v_add_f32 v94, v74, v75
    v_add_f32 v93, v93, v88
    v_add_f32 v93, v93, v94
    ''')
    dpp_red(A,'v_add_f32',[93],D8)
    A('v_rcp_f32 v93, v93\ns_nop 0')
    for r in (72,73,74,75,88): A('v_mul_f32 v%d, v%d, v93'%(r,r))
    A('''
    v_cvt_pk_bf16_f32 v124, v72, v73
    v_cvt_pk_bf16_f32 v125, v74, v75
    v_mov_b32_dpp v89, v88 quad_perm:[1,0,3,2] row_mask:0xf bank_mask:0xf
    global_store_dwordx2 v1, v[124:125], s[18:19] sc1
    v_cvt_pk_bf16_f32 v126, v88, v89
    s_mov_b32 exec_lo, 0x55555555
    s_mov_b32 exec_hi, 0x55555555
    global_store_dword v0, v126, s[18:19] sc1
    s_mov_b64 exec, -1
    s_add_u32 s14, s14, 2
    s_cmp_ge_u32 s14, 64
    s_cbranch_scc1 M_end
    s_add_u32 s16, s16, 65536
    s_addc_u32 s17, s17, 0
    s_add_u32 s18, s18, %d
    s_addc_u32 s19, s19, 0
    s_mov_b32 s24, s52
    s_mov_b32 s25, s53
    s_cmp_ge_u32 s14, 62
    s_cbranch_scc1 GX_noinc
    s_add_u32 s52, s52, 57344
    s_addc_u32 s53, s53, 0
    GX_noinc:
    s_xor_b32 s42, s42, 26624
    s_branch GX_loop
    '''%(32*PXX_STR))
```
